```python
import torch

def _softmax(x, axis=-1):
    return torch.softmax(x, dim=axis)

def _gelu(x):
    return torch.nn.functional.gelu(x, approximate='tanh')

def _silu(x):
    return torch.nn.functional.silu(x)

def _sigmoid(x):
    return torch.sigmoid(x)

def _layernorm(x, axis=-1, eps=1e-05):
    m = x.mean(dim=axis, keepdim=True)
    v = x.var(dim=axis, keepdim=True, unbiased=False)
    return (x - m) / torch.sqrt(v + eps)

def _scatter_add(tgt, idx, src, axis=0):
    return tgt.clone().index_add_(axis, idx, src)

def _segment_sum(src, seg, n):
    out = torch.zeros((n,) + src.shape[1:], dtype=src.dtype)
    return out.index_add_(0, seg, src)

def _pad(x, pw):
    flat = tuple((v for pair in reversed(pw) for v in pair))
    return torch.nn.functional.pad(x, flat)
kernel_name = 'standalone__dilated_atrous__vision'

def setup_inputs():

    _w = lambda a: (lambda t: t.to(torch.bfloat16) if t.is_floating_point() else t)(torch.as_tensor(a))
    H = W = 224
    C = 96
    k = 3
    return {'x': _w((lambda *s: torch.randn(*s, dtype=torch.bfloat16) * 0.05)(1, H, W, C)), 'w': _w((lambda *s: torch.randn(*s, dtype=torch.bfloat16) * 0.05)(k, k, C, C) * (1.0 / (k * C ** 0.5)))}

def reference(x, w):
    B, H, W, C = x.shape
    k = 3
    rate = 2
    pad = (k - 1) * rate // 2
    xp = _pad(x, ((0, 0), (pad, pad), (pad, pad), (0, 0)))
    out = torch.zeros_like(x)
    for i in range(k):
        for j in range(k):
            tap = xp[:, i * rate:i * rate + H, j * rate:j * rate + W, :].clone()
            out = out + torch.einsum('bhwc,co->bhwo', tap, w[i, j])
    return out
```

```python
import sys

H = W = 224
C = 96
TH, TW = 14, 16
HR, HC = TH + 4, TW + 4
PSTR = 224
IN_BYTES = HR * HC * PSTR
WB = IN_BYTES
TAPB = 96 * 96 * 2
NSLOT = 4
LDS_TOTAL = WB + NSLOT * TAPB
XBYTES = H * W * C * 2
WBYTES = 9 * TAPB
BIG = 0x40000000

out = []
def e(s=""):
    out.append(s)

HEADER = open("standalone__dilated_atrous__vision.s.ref").read().split("; Override launch")[0]

e(HEADER.rstrip())
e(f"; @launch grid=(224,1,1) block=(256,1,1) lds={LDS_TOTAL}")
e('.amdgcn_target "amdgcn-amd-amdhsa--gfx950"')
e(".text")
e(".globl standalone__dilated_atrous__vision_kernel")
e(".p2align 8")
e(".type standalone__dilated_atrous__vision_kernel,@function")
e("standalone__dilated_atrous__vision_kernel:")

S_X, S_Wt, S_O = 8, 12, 16
S_WAVE = 20
S_Y0, S_X0 = 21, 22
S_TX = 23
S_T0, S_T1, S_T2, S_T3 = 24, 25, 26, 27
S_M0 = 28
S_ROWOFF = 29
S_WOFF = 30
S_OBASE = 31
S_BIG = 32
V_LANE = 1
V_INORM, V_ILEFT, V_IRIGHT = 2, 3, 4
V_WOFF = 5
V_A = 6
V_B01lo, V_B2lo, V_B01hi, V_B2hi = 7, 8, 9, 10
V_O1, V_O2 = 11, 12
V_T0, V_T1, V_T2, V_T3 = 13, 14, 15, 16
V_ST = 20
ACC = 64
PA = [148, 176]
WF = [204, 216]
NVGPR = 228

e("    s_cmp_ge_u32 s2, 224")
e("    s_cbranch_scc1 L_done")
e("    s_load_dwordx4 s[4:7], s[0:1], 0")
e("    s_load_dwordx2 s[34:35], s[0:1], 16")
e(f"    v_and_b32 v{V_LANE}, 63, v0")
e(f"    v_lshrrev_b32 v{V_T0}, 6, v0")
e("    s_nop 0")
e(f"    v_readfirstlane_b32 s{S_WAVE}, v{V_T0}")
e(f"    s_mov_b32 s{S_T0}, 306783379")
e(f"    s_mul_hi_u32 s{S_T1}, s2, s{S_T0}")
e(f"    s_mul_i32 s{S_T2}, s{S_T1}, 14")
e(f"    s_sub_u32 s{S_TX}, s2, s{S_T2}")
e(f"    s_mul_i32 s{S_Y0}, s{S_T1}, {TH}")
e(f"    s_lshl_b32 s{S_X0}, s{S_TX}, 4")
e(f"    s_mov_b32 s{S_BIG}, {BIG}")
e(f"    v_mul_u32_u24 v{V_T0}, 0x1c72, v{V_LANE}")
out.pop()
e(f"    v_mul_u32_u24 v{V_T0}, 4682, v{V_LANE}")
e(f"    v_lshrrev_b32 v{V_T0}, 16, v{V_T0}")
e(f"    v_mul_u32_u24 v{V_T1}, 14, v{V_T0}")
e(f"    v_sub_u32 v{V_T1}, v{V_LANE}, v{V_T1}")
e(f"    v_mul_u32_u24 v{V_T2}, 192, v{V_T0}")
e(f"    v_lshl_add_u32 v{V_T2}, v{V_T1}, 4, v{V_T2}")
e(f"    v_mov_b32 v{V_T3}, {BIG}")
e(f"    v_cmp_gt_u32 vcc, 12, v{V_T1}")
e("    s_nop 1")
e(f"    v_cndmask_b32 v{V_INORM}, v{V_T3}, v{V_T2}, vcc")
e(f"    v_mov_b32 v{V_ILEFT}, v{V_INORM}")
e(f"    v_mov_b32 v{V_IRIGHT}, v{V_INORM}")
e(f"    s_cmp_eq_u32 s{S_TX}, 0")
e("    s_cbranch_scc0 L_notleft")
e(f"    v_subrev_u32 v{V_T2}, 384, v{V_INORM}")
e(f"    v_cmp_lt_u32 vcc, 1, v{V_T0}")
e("    s_nop 1")
e(f"    v_cndmask_b32 v{V_ILEFT}, v{V_T3}, v{V_T2}, vcc")
e("L_notleft:")
e(f"    s_cmp_eq_u32 s{S_TX}, 13")
e("    s_cbranch_scc0 L_notright")
e(f"    v_cmp_gt_u32 vcc, 2, v{V_T0}")
e("    s_nop 1")
e(f"    v_cndmask_b32 v{V_IRIGHT}, v{V_T3}, v{V_INORM}, vcc")
e("L_notright:")
e(f"    v_lshlrev_b32 v{V_WOFF}, 4, v{V_LANE}")
e("    s_waitcnt lgkmcnt(0)")
e(f"    s_mov_b32 s{S_X}, s4")
e(f"    s_mov_b32 s{S_X+1}, s5")
e(f"    s_mov_b32 s{S_X+2}, {XBYTES}")
e(f"    s_mov_b32 s{S_X+3}, 0x00020000")
e(f"    s_mov_b32 s{S_Wt}, s6")
e(f"    s_mov_b32 s{S_Wt+1}, s7")
e(f"    s_mov_b32 s{S_Wt+2}, {WBYTES}")
e(f"    s_mov_b32 s{S_Wt+3}, 0x00020000")
e(f"    s_mov_b32 s{S_O}, s34")
e(f"    s_mov_b32 s{S_O+1}, s35")
e(f"    s_mov_b32 s{S_O+2}, {XBYTES}")
e(f"    s_mov_b32 s{S_O+3}, 0x00020000")

e("    s_mov_b32 exec_hi, 0x00ffffff")
e(f"    s_cmp_eq_u32 s{S_TX}, 0")
e(f"    s_cselect_b32 s{S_T3}, 384, 0")
for it in range(5):
    if it == 4:
        e(f"    s_cmp_ge_u32 s{S_WAVE}, 2")
        e("    s_cbranch_scc1 L_in_done")
    e(f"    s_add_u32 s{S_T0}, s{S_WAVE}, {4*it}")
    e(f"    s_add_u32 s{S_T1}, s{S_T0}, s{S_Y0}")
    e(f"    s_sub_u32 s{S_T1}, s{S_T1}, 2")
    e(f"    s_mul_i32 s{S_T2}, s{S_T1}, 224")
    e(f"    s_add_u32 s{S_T2}, s{S_T2}, s{S_X0}")
    e(f"    s_sub_u32 s{S_T2}, s{S_T2}, 2")
    e(f"    s_mul_i32 s{S_ROWOFF}, s{S_T2}, 192")
    e(f"    s_cmp_lt_u32 s{S_T1}, 224")
    e(f"    s_cselect_b32 s{S_ROWOFF}, s{S_ROWOFF}, s{S_BIG}")
    e(f"    s_mul_i32 s{S_M0}, s{S_T0}, {HC*PSTR}")
    for j in range(5):
        if j == 0:
            e(f"    s_add_u32 s{S_T2}, s{S_ROWOFF}, s{S_T3}")
            e(f"    s_mov_b32 m0, s{S_M0}")
            e("    s_nop 0")
            e(f"    buffer_load_dwordx4 v{V_ILEFT}, s[{S_X}:{S_X+3}], s{S_T2} offen lds")
        else:
            e(f"    s_add_u32 s{S_T2}, s{S_ROWOFF}, {j*4*192}")
            e(f"    s_add_u32 s{S_M0}, s{S_M0}, {4*PSTR}")
            e(f"    s_mov_b32 m0, s{S_M0}")
            e("    s_nop 0")
            v = V_IRIGHT if j == 4 else V_INORM
            e(f"    buffer_load_dwordx4 v{v}, s[{S_X}:{S_X+3}], s{S_T2} offen lds")
e("L_in_done:")
e("    s_mov_b64 exec, -1")
e(f"    s_mul_i32 s{S_WOFF}, s{S_WAVE}, 4608")

def emit_wdma(tap):
    slot = tap % NSLOT
    e(f"    s_add_u32 s{S_T2}, s{S_WOFF}, {tap*TAPB}")
    e(f"    s_add_u32 s{S_M0}, s{S_WOFF}, {WB + slot*TAPB}")
    e(f"    s_mov_b32 m0, s{S_M0}")
    e("    s_nop 0")
    for i in range(4):
        off = f" offset:{i*1024}" if i else ""
        e(f"    buffer_load_dwordx4 v{V_WOFF}, s[{S_Wt}:{S_Wt+3}], s{S_T2} offen{off} lds")
    e("    s_mov_b32 exec_hi, 0")
    e(f"    s_add_u32 s{S_M0}, s{S_M0}, 4096")
    e(f"    s_add_u32 s{S_T2}, s{S_T2}, 4096")
    e(f"    s_mov_b32 m0, s{S_M0}")
    e("    s_nop 0")
    e(f"    buffer_load_dwordx4 v{V_WOFF}, s[{S_Wt}:{S_Wt+3}], s{S_T2} offen lds")
    e("    s_mov_b64 exec, -1")

for t in range(3):
    emit_wdma(t)

e(f"    v_and_b32 v{V_T0}, 15, v{V_LANE}")
e(f"    v_lshrrev_b32 v{V_T1}, 4, v{V_LANE}")
e(f"    s_and_b32 s{S_T0}, s{S_WAVE}, 1")
e(f"    s_mul_i32 s{S_T0}, s{S_T0}, {7*HC*PSTR}")
e(f"    v_mul_u32_u24 v{V_A}, {PSTR}, v{V_T0}")
e(f"    v_lshl_add_u32 v{V_A}, v{V_T1}, 4, v{V_A}")
e(f"    v_add_u32 v{V_A}, s{S_T0}, v{V_A}")
e(f"    v_lshrrev_b32 v{V_T2}, 2, v{V_T0}")
e(f"    v_and_b32 v{V_T3}, 3, v{V_T0}")
e(f"    v_lshl_add_u32 v{V_T2}, v{V_T1}, 3, v{V_T2}")
e(f"    v_mul_u32_u24 v{V_T2}, 192, v{V_T2}")
e(f"    s_lshr_b32 s{S_T1}, s{S_WAVE}, 1")
e(f"    s_mul_i32 s{S_T1}, s{S_T1}, 96")
e(f"    s_add_u32 s{S_T1}, s{S_T1}, {WB}")
e(f"    v_add_u32 v{V_T2}, s{S_T1}, v{V_T2}")
e(f"    v_lshl_add_u32 v{V_B01lo}, v{V_T3}, 4, v{V_T2}")
e(f"    v_lshl_add_u32 v{V_B2lo}, v{V_T3}, 3, v{V_T2}")
e(f"    v_add_u32 v{V_B2lo}, 64, v{V_B2lo}")
e(f"    v_add_u32 v{V_B01hi}, {2*TAPB}, v{V_B01lo}")
e(f"    v_add_u32 v{V_B2hi}, {2*TAPB}, v{V_B2lo}")
e(f"    v_mul_u32_u24 v{V_O1}, 192, v{V_T0}")
e(f"    s_lshr_b32 s{S_T1}, s{S_WAVE}, 1")
e(f"    s_mul_i32 s{S_T1}, s{S_T1}, 96")
e(f"    v_add_u32 v{V_O1}, s{S_T1}, v{V_O1}")
e(f"    v_lshl_add_u32 v{V_O2}, v{V_T1}, 3, v{V_O1}")
e(f"    v_add_u32 v{V_O2}, 64, v{V_O2}")
e(f"    v_lshl_add_u32 v{V_O1}, v{V_T1}, 4, v{V_O1}")
e(f"    s_and_b32 s{S_T0}, s{S_WAVE}, 1")
e(f"    s_mul_i32 s{S_T0}, s{S_T0}, 7")
e(f"    s_add_u32 s{S_T0}, s{S_T0}, s{S_Y0}")
e(f"    s_mul_i32 s{S_T0}, s{S_T0}, 224")
e(f"    s_add_u32 s{S_T0}, s{S_T0}, s{S_X0}")
e(f"    s_mul_i32 s{S_OBASE}, s{S_T0}, 192")

def reads_for(step, buf):
    tap, ks = divmod(step, 3)
    ky, kx = divmod(tap, 3)
    r = []
    slot = tap % NSLOT
    for t in range(3):
        for half in range(2):
            off = (slot % 2) * TAPB + ks * 32 * 192 + half * 4 * 192 + (8 if t == 1 else 0)
            if slot < 2:
                base = V_B2lo if t == 2 else V_B01lo
            else:
                base = V_B2hi if t == 2 else V_B01hi
            d = WF[buf] + t * 4 + half * 2
            r.append(f"    ds_read_b64_tr_b16 v[{d}:{d+1}], v{base} offset:{off}")
    for i in range(7):
        off = ((i + 2 * ky) * HC + 2 * kx) * PSTR + ks * 64
        d = PA[buf] + i * 4
        r.append(f"    ds_read_b128 v[{d}:{d+3}], v{V_A} offset:{off}")
    return r

e("    s_waitcnt vmcnt(10)")
e("    s_barrier")
for r in reads_for(0, 0):
    e(r)
NSTEP = 27
for s in range(NSTEP):
    tap, ks = divmod(s, 3)
    buf = s % 2
    if ks == 2 and tap < 8:
        e(f"    s_waitcnt vmcnt({5 if tap + 2 <= 8 else 0})")
        e("    s_barrier")
        if tap + 3 <= 8:
            emit_wdma(tap + 3)
    e("    s_waitcnt lgkmcnt(0)")
    nxt = reads_for(s + 1, 1 - buf) if s + 1 < NSTEP else []
    m = 0
    for i in range(7):
        for t in range(3):
            acc = ACC + (i * 3 + t) * 4
            a = WF[buf] + t * 4
            b = PA[buf] + i * 4
            c = "0" if s == 0 else f"v[{acc}:{acc+3}]"
            e(f"    v_mfma_f32_16x16x32_bf16 v[{acc}:{acc+3}], v[{a}:{a+3}], v[{b}:{b+3}], {c}")
            if m < len(nxt):
                e(nxt[m])
            m += 1

e("    s_nop 7")
e("    s_nop 7")
for i in range(7):
    a0 = ACC + i * 12
    st = V_ST + (i % 2) * 6
    for q in range(6):
        e(f"    v_cvt_pk_bf16_f32 v{st+q}, v{a0+2*q}, v{a0+2*q+1}")
    e(f"    s_add_u32 s{S_T0}, s{S_OBASE}, {i*224*192}")
    e(f"    buffer_store_dwordx4 v[{st}:{st+3}], v{V_O1}, s[{S_O}:{S_O+3}], s{S_T0} offen")
    e(f"    buffer_store_dwordx2 v[{st+4}:{st+5}], v{V_O2}, s[{S_O}:{S_O+3}], s{S_T0} offen")
e("L_done:")
e("    s_endpgm")
e('.section .rodata,"a"')
e(".p2align 6")
e(".amdhsa_kernel standalone__dilated_atrous__vision_kernel")
e(f"  .amdhsa_next_free_vgpr {NVGPR}")
e("  .amdhsa_next_free_sgpr 40")
e(f"  .amdhsa_accum_offset {NVGPR}")
e("  .amdhsa_group_segment_fixed_size 0")
e("  .amdhsa_kernarg_size 40")
e("  .amdhsa_user_sgpr_count 2")
e("  .amdhsa_user_sgpr_kernarg_segment_ptr 1")
e("  .amdhsa_system_sgpr_workgroup_id_x 1")
e(".end_amdhsa_kernel")

path = sys.argv[1] if len(sys.argv) > 1 else "standalone__dilated_atrous__vision.s"
open(path, "w").write("\n".join(out) + "\n")
print("wrote", path, len(out), "lines")
```

```python
import sys

H = W = 224
C = 96
TH, TW = 14, 16
HR, HC = TH + 4, TW + 4
PSTR = 224
IN_BYTES = HR * HC * PSTR
WB = IN_BYTES
TAPB = 96 * 96 * 2
NSLOT = 4
LDS_TOTAL = WB + NSLOT * TAPB
XBYTES = H * W * C * 2
WBYTES = 9 * TAPB
BIG = 0x40000000

out = []
DEBUG = len(sys.argv) > 2
def e(s=""):
    out.append(s)

HEADER = open("standalone__dilated_atrous__vision.s.ref").read().split("; Override launch")[0]

e(HEADER.rstrip())
e(f"; @launch grid=(224,1,1) block=(256,1,1) lds={LDS_TOTAL}")
e('.amdgcn_target "amdgcn-amd-amdhsa--gfx950"')
e(".text")
e(".globl standalone__dilated_atrous__vision_kernel")
e(".p2align 8")
e(".type standalone__dilated_atrous__vision_kernel,@function")
e("standalone__dilated_atrous__vision_kernel:")

S_X, S_Wt, S_O = 8, 12, 16
S_WAVE = 20
S_Y0, S_X0 = 21, 22
S_TX = 23
S_T0, S_T1, S_T2, S_T3 = 24, 25, 26, 27
S_M0 = 28
S_ROWOFF = 29
S_WOFF = 30
S_OBASE = 31
S_BIG = 32
V_LANE = 1
V_INORM, V_ILEFT, V_IRIGHT = 2, 3, 4
V_WOFF = 5
V_A = 6
V_B01lo, V_B2lo, V_B01hi, V_B2hi = 7, 8, 9, 10
V_O1, V_O2 = 11, 12
V_T0, V_T1, V_T2, V_T3 = 13, 14, 15, 16
V_ST = 20
ACC = 64
PA = [148, 176]
WF = [204, 216]
NVGPR = 228

e("    s_cmp_ge_u32 s2, 224")
e("    s_cbranch_scc1 L_done")
if DEBUG:
    e("    s_memrealtime s[40:41]")
    e("    s_memtime s[42:43]")
    e("    s_load_dwordx2 s[36:37], s[0:1], 24")
e("    s_load_dwordx4 s[4:7], s[0:1], 0")
e("    s_load_dwordx2 s[34:35], s[0:1], 16")
e(f"    v_and_b32 v{V_LANE}, 63, v0")
e(f"    v_lshrrev_b32 v{V_T0}, 6, v0")
e("    s_nop 0")
e(f"    v_readfirstlane_b32 s{S_WAVE}, v{V_T0}")
e(f"    s_mov_b32 s{S_T0}, 306783379")
e(f"    s_mul_hi_u32 s{S_T1}, s2, s{S_T0}")
e(f"    s_mul_i32 s{S_T2}, s{S_T1}, 14")
e(f"    s_sub_u32 s{S_TX}, s2, s{S_T2}")
e(f"    s_mul_i32 s{S_Y0}, s{S_T1}, {TH}")
e(f"    s_lshl_b32 s{S_X0}, s{S_TX}, 4")
e(f"    s_mov_b32 s{S_BIG}, {BIG}")
e(f"    v_mul_u32_u24 v{V_T0}, 0x1c72, v{V_LANE}")
out.pop()
e(f"    v_mul_u32_u24 v{V_T0}, 4682, v{V_LANE}")
e(f"    v_lshrrev_b32 v{V_T0}, 16, v{V_T0}")
e(f"    v_mul_u32_u24 v{V_T1}, 14, v{V_T0}")
e(f"    v_sub_u32 v{V_T1}, v{V_LANE}, v{V_T1}")
e(f"    v_mul_u32_u24 v{V_T2}, 192, v{V_T0}")
e(f"    v_lshl_add_u32 v{V_T2}, v{V_T1}, 4, v{V_T2}")
e(f"    v_mov_b32 v{V_T3}, {BIG}")
e(f"    v_cmp_gt_u32 vcc, 12, v{V_T1}")
e("    s_nop 1")
e(f"    v_cndmask_b32 v{V_INORM}, v{V_T3}, v{V_T2}, vcc")
e(f"    v_mov_b32 v{V_ILEFT}, v{V_INORM}")
e(f"    v_mov_b32 v{V_IRIGHT}, v{V_INORM}")
e(f"    s_cmp_eq_u32 s{S_TX}, 0")
e("    s_cbranch_scc0 L_notleft")
e(f"    v_subrev_u32 v{V_T2}, 384, v{V_INORM}")
e(f"    v_cmp_lt_u32 vcc, 1, v{V_T0}")
e("    s_nop 1")
e(f"    v_cndmask_b32 v{V_ILEFT}, v{V_T3}, v{V_T2}, vcc")
e("L_notleft:")
e(f"    s_cmp_eq_u32 s{S_TX}, 13")
e("    s_cbranch_scc0 L_notright")
e(f"    v_cmp_gt_u32 vcc, 2, v{V_T0}")
e("    s_nop 1")
e(f"    v_cndmask_b32 v{V_IRIGHT}, v{V_T3}, v{V_INORM}, vcc")
e("L_notright:")
e(f"    v_lshlrev_b32 v{V_WOFF}, 4, v{V_LANE}")
e("    s_waitcnt lgkmcnt(0)")
e(f"    s_mov_b32 s{S_X}, s4")
e(f"    s_mov_b32 s{S_X+1}, s5")
e(f"    s_mov_b32 s{S_X+2}, {XBYTES}")
e(f"    s_mov_b32 s{S_X+3}, 0x00020000")
e(f"    s_mov_b32 s{S_Wt}, s6")
e(f"    s_mov_b32 s{S_Wt+1}, s7")
e(f"    s_mov_b32 s{S_Wt+2}, {WBYTES}")
e(f"    s_mov_b32 s{S_Wt+3}, 0x00020000")
e(f"    s_mov_b32 s{S_O}, s34")
e(f"    s_mov_b32 s{S_O+1}, s35")
e(f"    s_mov_b32 s{S_O+2}, {XBYTES}")
e(f"    s_mov_b32 s{S_O+3}, 0x00020000")

e("    s_mov_b32 exec_hi, 0x00ffffff")
e(f"    s_cmp_eq_u32 s{S_TX}, 0")
e(f"    s_cselect_b32 s{S_T3}, 384, 0")
for it in range(5):
    if it == 4:
        e(f"    s_cmp_ge_u32 s{S_WAVE}, 2")
        e("    s_cbranch_scc1 L_in_done")
    e(f"    s_add_u32 s{S_T0}, s{S_WAVE}, {4*it}")
    e(f"    s_add_u32 s{S_T1}, s{S_T0}, s{S_Y0}")
    e(f"    s_sub_u32 s{S_T1}, s{S_T1}, 2")
    e(f"    s_mul_i32 s{S_T2}, s{S_T1}, 224")
    e(f"    s_add_u32 s{S_T2}, s{S_T2}, s{S_X0}")
    e(f"    s_sub_u32 s{S_T2}, s{S_T2}, 2")
    e(f"    s_mul_i32 s{S_ROWOFF}, s{S_T2}, 192")
    e(f"    s_cmp_lt_u32 s{S_T1}, 224")
    e(f"    s_cselect_b32 s{S_ROWOFF}, s{S_ROWOFF}, s{S_BIG}")
    e(f"    s_mul_i32 s{S_M0}, s{S_T0}, {HC*PSTR}")
    for j in range(5):
        if j == 0:
            e(f"    s_add_u32 s{S_T2}, s{S_ROWOFF}, s{S_T3}")
            e(f"    s_mov_b32 m0, s{S_M0}")
            e("    s_nop 0")
            e(f"    buffer_load_dwordx4 v{V_ILEFT}, s[{S_X}:{S_X+3}], s{S_T2} offen lds")
        else:
            e(f"    s_add_u32 s{S_T2}, s{S_ROWOFF}, {j*4*192}")
            e(f"    s_add_u32 s{S_M0}, s{S_M0}, {4*PSTR}")
            e(f"    s_mov_b32 m0, s{S_M0}")
            e("    s_nop 0")
            v = V_IRIGHT if j == 4 else V_INORM
            e(f"    buffer_load_dwordx4 v{v}, s[{S_X}:{S_X+3}], s{S_T2} offen lds")
e("L_in_done:")
e("    s_mov_b64 exec, -1")
e(f"    s_mul_i32 s{S_WOFF}, s{S_WAVE}, 4608")

def emit_wdma(tap):
    slot = tap % NSLOT
    e(f"    s_add_u32 s{S_T2}, s{S_WOFF}, {tap*TAPB}")
    e(f"    s_add_u32 s{S_M0}, s{S_WOFF}, {WB + slot*TAPB}")
    e(f"    s_mov_b32 m0, s{S_M0}")
    e("    s_nop 0")
    for i in range(4):
        off = f" offset:{i*1024}" if i else ""
        e(f"    buffer_load_dwordx4 v{V_WOFF}, s[{S_Wt}:{S_Wt+3}], s{S_T2} offen{off} lds")
    e("    s_mov_b32 exec_hi, 0")
    e(f"    s_add_u32 s{S_M0}, s{S_M0}, 4096")
    e(f"    s_add_u32 s{S_T2}, s{S_T2}, 4096")
    e(f"    s_mov_b32 m0, s{S_M0}")
    e("    s_nop 0")
    e(f"    buffer_load_dwordx4 v{V_WOFF}, s[{S_Wt}:{S_Wt+3}], s{S_T2} offen lds")
    e("    s_mov_b64 exec, -1")

for t in range(3):
    emit_wdma(t)

e(f"    v_and_b32 v{V_T0}, 15, v{V_LANE}")
e(f"    v_lshrrev_b32 v{V_T1}, 4, v{V_LANE}")
e(f"    s_and_b32 s{S_T0}, s{S_WAVE}, 1")
e(f"    s_mul_i32 s{S_T0}, s{S_T0}, {7*HC*PSTR}")
e(f"    v_mul_u32_u24 v{V_A}, {PSTR}, v{V_T0}")
e(f"    v_lshl_add_u32 v{V_A}, v{V_T1}, 4, v{V_A}")
e(f"    v_add_u32 v{V_A}, s{S_T0}, v{V_A}")
e(f"    v_lshrrev_b32 v{V_T2}, 2, v{V_T0}")
e(f"    v_and_b32 v{V_T3}, 3, v{V_T0}")
e(f"    v_lshl_add_u32 v{V_T2}, v{V_T1}, 3, v{V_T2}")
e(f"    v_mul_u32_u24 v{V_T2}, 192, v{V_T2}")
e(f"    s_lshr_b32 s{S_T1}, s{S_WAVE}, 1")
e(f"    s_mul_i32 s{S_T1}, s{S_T1}, 96")
e(f"    s_add_u32 s{S_T1}, s{S_T1}, {WB}")
e(f"    v_add_u32 v{V_T2}, s{S_T1}, v{V_T2}")
e(f"    v_lshl_add_u32 v{V_B01lo}, v{V_T3}, 4, v{V_T2}")
e(f"    v_lshl_add_u32 v{V_B2lo}, v{V_T3}, 3, v{V_T2}")
e(f"    v_add_u32 v{V_B2lo}, 64, v{V_B2lo}")
e(f"    v_add_u32 v{V_B01hi}, {2*TAPB}, v{V_B01lo}")
e(f"    v_add_u32 v{V_B2hi}, {2*TAPB}, v{V_B2lo}")
e(f"    v_mul_u32_u24 v{V_O1}, 192, v{V_T0}")
e(f"    s_lshr_b32 s{S_T1}, s{S_WAVE}, 1")
e(f"    s_mul_i32 s{S_T1}, s{S_T1}, 96")
e(f"    v_add_u32 v{V_O1}, s{S_T1}, v{V_O1}")
e(f"    v_lshl_add_u32 v{V_O2}, v{V_T1}, 3, v{V_O1}")
e(f"    v_add_u32 v{V_O2}, 64, v{V_O2}")
e(f"    v_lshl_add_u32 v{V_O1}, v{V_T1}, 4, v{V_O1}")
e(f"    s_and_b32 s{S_T0}, s{S_WAVE}, 1")
e(f"    s_mul_i32 s{S_T0}, s{S_T0}, 7")
e(f"    s_add_u32 s{S_T0}, s{S_T0}, s{S_Y0}")
e(f"    s_mul_i32 s{S_T0}, s{S_T0}, 224")
e(f"    s_add_u32 s{S_T0}, s{S_T0}, s{S_X0}")
e(f"    s_mul_i32 s{S_OBASE}, s{S_T0}, 192")

def reads_for(step, buf):
    tap, ks = divmod(step, 3)
    ky, kx = divmod(tap, 3)
    r = []
    slot = tap % NSLOT
    for t in range(3):
        for half in range(2):
            off = (slot % 2) * TAPB + ks * 32 * 192 + half * 4 * 192 + (8 if t == 1 else 0)
            if slot < 2:
                base = V_B2lo if t == 2 else V_B01lo
            else:
                base = V_B2hi if t == 2 else V_B01hi
            d = WF[buf] + t * 4 + half * 2
            r.append(f"    ds_read_b64_tr_b16 v[{d}:{d+1}], v{base} offset:{off}")
    for i in range(7):
        off = ((i + 2 * ky) * HC + 2 * kx) * PSTR + ks * 64
        d = PA[buf] + i * 4
        r.append(f"    ds_read_b128 v[{d}:{d+3}], v{V_A} offset:{off}")
    return r

if DEBUG:
    e("    s_memtime s[44:45]")
e("    s_waitcnt vmcnt(10)")
e("    s_barrier")
if DEBUG:
    e("    s_memtime s[46:47]")
for r in reads_for(0, 0):
    e(r)
NSTEP = 27
for s in range(NSTEP):
    tap, ks = divmod(s, 3)
    buf = s % 2
    if ks == 2 and tap < 8:
        e(f"    s_waitcnt vmcnt({5 if tap + 2 <= 8 else 0})")
        e("    s_barrier")
        if tap + 3 <= 8:
            emit_wdma(tap + 3)
    e("    s_waitcnt lgkmcnt(0)")
    nxt = reads_for(s + 1, 1 - buf) if s + 1 < NSTEP else []
    m = 0
    for i in range(7):
        for t in range(3):
            acc = ACC + (i * 3 + t) * 4
            a = WF[buf] + t * 4
            b = PA[buf] + i * 4
            c = "0" if s == 0 else f"v[{acc}:{acc+3}]"
            e(f"    v_mfma_f32_16x16x32_bf16 v[{acc}:{acc+3}], v[{a}:{a+3}], v[{b}:{b+3}], {c}")
            if m < len(nxt):
                e(nxt[m])
            m += 1

if DEBUG:
    e("    s_memtime s[48:49]")
e("    s_nop 7")
e("    s_nop 7")
for i in range(7):
    a0 = ACC + i * 12
    st = V_ST + (i % 2) * 6
    for q in range(6):
        e(f"    v_cvt_pk_bf16_f32 v{st+q}, v{a0+2*q}, v{a0+2*q+1}")
    e(f"    s_add_u32 s{S_T0}, s{S_OBASE}, {i*224*192}")
    e(f"    buffer_store_dwordx4 v[{st}:{st+3}], v{V_O1}, s[{S_O}:{S_O+3}], s{S_T0} offen")
    e(f"    buffer_store_dwordx2 v[{st+4}:{st+5}], v{V_O2}, s[{S_O}:{S_O+3}], s{S_T0} offen")
if DEBUG:
    e("    s_waitcnt vmcnt(0)")
    e("    s_memtime s[50:51]")
    e("    s_memrealtime s[52:53]")
    e("    s_waitcnt lgkmcnt(0)")
    e("    s_mov_b32 s56, s36")
    e("    s_mov_b32 s57, s37")
    e("    s_mov_b32 s58, 256")
    e("    s_mov_b32 s59, 0x00020000")
    e("    s_not_b32 s40, s40")
    e("    s_sub_u32 s44, s44, s42")
    e("    s_sub_u32 s46, s46, s42")
    e("    s_sub_u32 s48, s48, s42")
    e("    s_sub_u32 s50, s50, s42")
    e("    v_mov_b32 v20, s40")
    e("    v_mov_b32 v21, s52")
    e("    v_mov_b32 v22, s44")
    e("    v_mov_b32 v23, s46")
    e("    v_mov_b32 v24, s48")
    e("    v_mov_b32 v25, s50")
    e("    v_mov_b32 v26, 0")
    e("    s_mov_b64 exec, 1")
    for q in range(6):
        e(f"    buffer_atomic_umax v{20+q}, v26, s[56:59], 0 offen offset:{4*q}")
    e("    v_not_b32 v22, v22")
    e("    v_not_b32 v23, v23")
    e("    v_not_b32 v24, v24")
    e("    v_not_b32 v25, v25")
    for q in range(2,6):
        e(f"    buffer_atomic_umax v{20+q}, v26, s[56:59], 0 offen offset:{16+4*q}")
e("L_done:")
e("    s_endpgm")
e('.section .rodata,"a"')
e(".p2align 6")
e(".amdhsa_kernel standalone__dilated_atrous__vision_kernel")
e(f"  .amdhsa_next_free_vgpr {NVGPR}")
e("  .amdhsa_next_free_sgpr 64")
e(f"  .amdhsa_accum_offset {NVGPR}")
e("  .amdhsa_group_segment_fixed_size 0")
e("  .amdhsa_kernarg_size 40")
e("  .amdhsa_user_sgpr_count 2")
e("  .amdhsa_user_sgpr_kernarg_segment_ptr 1")
e("  .amdhsa_system_sgpr_workgroup_id_x 1")
e(".end_amdhsa_kernel")

path = sys.argv[1] if len(sys.argv) > 1 else "standalone__dilated_atrous__vision.s"
open(path, "w").write("\n".join(out) + "\n")
print("wrote", path, len(out), "lines")
```

```python
import sys

H = W = 224
C = 96
TH, TW = 14, 16
HR, HC = TH + 4, TW + 4
PSTR = 224
IN_BYTES = HR * HC * PSTR
WB = IN_BYTES
TAPB = 96 * 96 * 2
NSLOT = 4
LDS_TOTAL = WB + NSLOT * TAPB
XBYTES = H * W * C * 2
WBYTES = 9 * TAPB
BIG = 0x40000000

out = []
DEBUG = len(sys.argv) > 2
def e(s=""):
    out.append(s)

HEADER = open("standalone__dilated_atrous__vision.s.ref").read().split("; Override launch")[0]

e(HEADER.rstrip())
e(f"; @launch grid=(224,1,1) block=(256,1,1) lds={LDS_TOTAL}")
e('.amdgcn_target "amdgcn-amd-amdhsa--gfx950"')
e(".text")
e(".globl standalone__dilated_atrous__vision_kernel")
e(".p2align 8")
e(".type standalone__dilated_atrous__vision_kernel,@function")
e("standalone__dilated_atrous__vision_kernel:")

S_X, S_Wt, S_O = 8, 12, 16
S_WAVE = 20
S_Y0, S_X0 = 21, 22
S_TX = 23
S_T0, S_T1, S_T2, S_T3 = 24, 25, 26, 27
S_M0 = 28
S_ROWOFF = 29
S_WOFF = 30
S_OBASE = 31
S_BIG = 32
V_LANE = 1
V_INORM, V_ILEFT, V_IRIGHT = 2, 3, 4
V_WOFF = 5
V_A = 6
V_B01lo, V_B2lo, V_B01hi, V_B2hi = 7, 8, 9, 10
V_O1, V_O2 = 11, 12
V_T0, V_T1, V_T2, V_T3 = 13, 14, 15, 16
V_ST = 20
ACC = 64
PA = [148, 176]
WF = [204, 216]
NVGPR = 228

e("    s_cmp_ge_u32 s2, 224")
e("    s_cbranch_scc1 L_done")
if DEBUG:
    e("    s_memrealtime s[40:41]")
    e("    s_memtime s[42:43]")
    e("    s_load_dwordx2 s[36:37], s[0:1], 24")
e("    s_load_dwordx4 s[4:7], s[0:1], 0")
e("    s_load_dwordx2 s[34:35], s[0:1], 16")
e(f"    v_and_b32 v{V_LANE}, 63, v0")
e(f"    v_lshrrev_b32 v{V_T0}, 6, v0")
e("    s_nop 0")
e(f"    v_readfirstlane_b32 s{S_WAVE}, v{V_T0}")
e(f"    s_mov_b32 s{S_T0}, 306783379")
e(f"    s_mul_hi_u32 s{S_T1}, s2, s{S_T0}")
e(f"    s_mul_i32 s{S_T2}, s{S_T1}, 14")
e(f"    s_sub_u32 s{S_TX}, s2, s{S_T2}")
e(f"    s_mul_i32 s{S_Y0}, s{S_T1}, {TH}")
e(f"    s_lshl_b32 s{S_X0}, s{S_TX}, 4")
e(f"    s_mov_b32 s{S_BIG}, {BIG}")
e(f"    v_mul_u32_u24 v{V_T0}, 0x1c72, v{V_LANE}")
out.pop()
e(f"    v_mul_u32_u24 v{V_T0}, 4682, v{V_LANE}")
e(f"    v_lshrrev_b32 v{V_T0}, 16, v{V_T0}")
e(f"    v_mul_u32_u24 v{V_T1}, 14, v{V_T0}")
e(f"    v_sub_u32 v{V_T1}, v{V_LANE}, v{V_T1}")
e(f"    v_mul_u32_u24 v{V_T2}, 192, v{V_T0}")
e(f"    v_lshl_add_u32 v{V_T2}, v{V_T1}, 4, v{V_T2}")
e(f"    v_mov_b32 v{V_T3}, {BIG}")
e(f"    v_cmp_gt_u32 vcc, 12, v{V_T1}")
e("    s_nop 1")
e(f"    v_cndmask_b32 v{V_INORM}, v{V_T3}, v{V_T2}, vcc")
e(f"    v_mov_b32 v{V_ILEFT}, v{V_INORM}")
e(f"    v_mov_b32 v{V_IRIGHT}, v{V_INORM}")
e(f"    s_cmp_eq_u32 s{S_TX}, 0")
e("    s_cbranch_scc0 L_notleft")
e(f"    v_subrev_u32 v{V_T2}, 384, v{V_INORM}")
e(f"    v_cmp_lt_u32 vcc, 1, v{V_T0}")
e("    s_nop 1")
e(f"    v_cndmask_b32 v{V_ILEFT}, v{V_T3}, v{V_T2}, vcc")
e("L_notleft:")
e(f"    s_cmp_eq_u32 s{S_TX}, 13")
e("    s_cbranch_scc0 L_notright")
e(f"    v_cmp_gt_u32 vcc, 2, v{V_T0}")
e("    s_nop 1")
e(f"    v_cndmask_b32 v{V_IRIGHT}, v{V_T3}, v{V_INORM}, vcc")
e("L_notright:")
e(f"    v_lshlrev_b32 v{V_WOFF}, 4, v{V_LANE}")
e("    s_waitcnt lgkmcnt(0)")
if DEBUG:
    e("    s_memtime s[60:61]")
e(f"    s_mov_b32 s{S_X}, s4")
e(f"    s_mov_b32 s{S_X+1}, s5")
e(f"    s_mov_b32 s{S_X+2}, {XBYTES}")
e(f"    s_mov_b32 s{S_X+3}, 0x00020000")
e(f"    s_mov_b32 s{S_Wt}, s6")
e(f"    s_mov_b32 s{S_Wt+1}, s7")
e(f"    s_mov_b32 s{S_Wt+2}, {WBYTES}")
e(f"    s_mov_b32 s{S_Wt+3}, 0x00020000")
e(f"    s_mov_b32 s{S_O}, s34")
e(f"    s_mov_b32 s{S_O+1}, s35")
e(f"    s_mov_b32 s{S_O+2}, {XBYTES}")
e(f"    s_mov_b32 s{S_O+3}, 0x00020000")

e("    s_mov_b32 exec_hi, 0x00ffffff")
e(f"    s_cmp_eq_u32 s{S_TX}, 0")
e(f"    s_cselect_b32 s{S_T3}, 384, 0")
for it in range(5):
    if it == 4:
        e(f"    s_cmp_ge_u32 s{S_WAVE}, 2")
        e("    s_cbranch_scc1 L_in_done")
    e(f"    s_add_u32 s{S_T0}, s{S_WAVE}, {4*it}")
    e(f"    s_add_u32 s{S_T1}, s{S_T0}, s{S_Y0}")
    e(f"    s_sub_u32 s{S_T1}, s{S_T1}, 2")
    e(f"    s_mul_i32 s{S_T2}, s{S_T1}, 224")
    e(f"    s_add_u32 s{S_T2}, s{S_T2}, s{S_X0}")
    e(f"    s_sub_u32 s{S_T2}, s{S_T2}, 2")
    e(f"    s_mul_i32 s{S_ROWOFF}, s{S_T2}, 192")
    e(f"    s_cmp_lt_u32 s{S_T1}, 224")
    e(f"    s_cselect_b32 s{S_ROWOFF}, s{S_ROWOFF}, s{S_BIG}")
    e(f"    s_mul_i32 s{S_M0}, s{S_T0}, {HC*PSTR}")
    for j in range(5):
        if j == 0:
            e(f"    s_add_u32 s{S_T2}, s{S_ROWOFF}, s{S_T3}")
            e(f"    s_mov_b32 m0, s{S_M0}")
            e("    s_nop 0")
            e(f"    buffer_load_dwordx4 v{V_ILEFT}, s[{S_X}:{S_X+3}], s{S_T2} offen lds")
        else:
            e(f"    s_add_u32 s{S_T2}, s{S_ROWOFF}, {j*4*192}")
            e(f"    s_add_u32 s{S_M0}, s{S_M0}, {4*PSTR}")
            e(f"    s_mov_b32 m0, s{S_M0}")
            e("    s_nop 0")
            v = V_IRIGHT if j == 4 else V_INORM
            e(f"    buffer_load_dwordx4 v{v}, s[{S_X}:{S_X+3}], s{S_T2} offen lds")
e("L_in_done:")
if DEBUG:
    e("    s_memtime s[62:63]")
e("    s_mov_b64 exec, -1")
e(f"    s_mul_i32 s{S_WOFF}, s{S_WAVE}, 4608")

def emit_wdma(tap):
    slot = tap % NSLOT
    e(f"    s_add_u32 s{S_T2}, s{S_WOFF}, {tap*TAPB}")
    e(f"    s_add_u32 s{S_M0}, s{S_WOFF}, {WB + slot*TAPB}")
    e(f"    s_mov_b32 m0, s{S_M0}")
    e("    s_nop 0")
    for i in range(4):
        off = f" offset:{i*1024}" if i else ""
        e(f"    buffer_load_dwordx4 v{V_WOFF}, s[{S_Wt}:{S_Wt+3}], s{S_T2} offen{off} lds")
    e("    s_mov_b32 exec_hi, 0")
    e(f"    s_add_u32 s{S_M0}, s{S_M0}, 4096")
    e(f"    s_add_u32 s{S_T2}, s{S_T2}, 4096")
    e(f"    s_mov_b32 m0, s{S_M0}")
    e("    s_nop 0")
    e(f"    buffer_load_dwordx4 v{V_WOFF}, s[{S_Wt}:{S_Wt+3}], s{S_T2} offen lds")
    e("    s_mov_b64 exec, -1")

for t in range(3):
    emit_wdma(t)

e(f"    v_and_b32 v{V_T0}, 15, v{V_LANE}")
e(f"    v_lshrrev_b32 v{V_T1}, 4, v{V_LANE}")
e(f"    s_and_b32 s{S_T0}, s{S_WAVE}, 1")
e(f"    s_mul_i32 s{S_T0}, s{S_T0}, {7*HC*PSTR}")
e(f"    v_mul_u32_u24 v{V_A}, {PSTR}, v{V_T0}")
e(f"    v_lshl_add_u32 v{V_A}, v{V_T1}, 4, v{V_A}")
e(f"    v_add_u32 v{V_A}, s{S_T0}, v{V_A}")
e(f"    v_lshrrev_b32 v{V_T2}, 2, v{V_T0}")
e(f"    v_and_b32 v{V_T3}, 3, v{V_T0}")
e(f"    v_lshl_add_u32 v{V_T2}, v{V_T1}, 3, v{V_T2}")
e(f"    v_mul_u32_u24 v{V_T2}, 192, v{V_T2}")
e(f"    s_lshr_b32 s{S_T1}, s{S_WAVE}, 1")
e(f"    s_mul_i32 s{S_T1}, s{S_T1}, 96")
e(f"    s_add_u32 s{S_T1}, s{S_T1}, {WB}")
e(f"    v_add_u32 v{V_T2}, s{S_T1}, v{V_T2}")
e(f"    v_lshl_add_u32 v{V_B01lo}, v{V_T3}, 4, v{V_T2}")
e(f"    v_lshl_add_u32 v{V_B2lo}, v{V_T3}, 3, v{V_T2}")
e(f"    v_add_u32 v{V_B2lo}, 64, v{V_B2lo}")
e(f"    v_add_u32 v{V_B01hi}, {2*TAPB}, v{V_B01lo}")
e(f"    v_add_u32 v{V_B2hi}, {2*TAPB}, v{V_B2lo}")
e(f"    v_mul_u32_u24 v{V_O1}, 192, v{V_T0}")
e(f"    s_lshr_b32 s{S_T1}, s{S_WAVE}, 1")
e(f"    s_mul_i32 s{S_T1}, s{S_T1}, 96")
e(f"    v_add_u32 v{V_O1}, s{S_T1}, v{V_O1}")
e(f"    v_lshl_add_u32 v{V_O2}, v{V_T1}, 3, v{V_O1}")
e(f"    v_add_u32 v{V_O2}, 64, v{V_O2}")
e(f"    v_lshl_add_u32 v{V_O1}, v{V_T1}, 4, v{V_O1}")
e(f"    s_and_b32 s{S_T0}, s{S_WAVE}, 1")
e(f"    s_mul_i32 s{S_T0}, s{S_T0}, 7")
e(f"    s_add_u32 s{S_T0}, s{S_T0}, s{S_Y0}")
e(f"    s_mul_i32 s{S_T0}, s{S_T0}, 224")
e(f"    s_add_u32 s{S_T0}, s{S_T0}, s{S_X0}")
e(f"    s_mul_i32 s{S_OBASE}, s{S_T0}, 192")

def reads_for(step, buf):
    tap, ks = divmod(step, 3)
    ky, kx = divmod(tap, 3)
    r = []
    slot = tap % NSLOT
    for t in range(3):
        for half in range(2):
            off = (slot % 2) * TAPB + ks * 32 * 192 + half * 4 * 192 + (8 if t == 1 else 0)
            if slot < 2:
                base = V_B2lo if t == 2 else V_B01lo
            else:
                base = V_B2hi if t == 2 else V_B01hi
            d = WF[buf] + t * 4 + half * 2
            r.append(f"    ds_read_b64_tr_b16 v[{d}:{d+1}], v{base} offset:{off}")
    for i in range(7):
        off = ((i + 2 * ky) * HC + 2 * kx) * PSTR + ks * 64
        d = PA[buf] + i * 4
        r.append(f"    ds_read_b128 v[{d}:{d+3}], v{V_A} offset:{off}")
    return r

if DEBUG:
    e("    s_memtime s[44:45]")
e("    s_waitcnt vmcnt(10)")
e("    s_barrier")
if DEBUG:
    e("    s_memtime s[46:47]")
for r in reads_for(0, 0):
    e(r)
NSTEP = 27
for s in range(NSTEP):
    tap, ks = divmod(s, 3)
    buf = s % 2
    if ks == 2 and tap < 8:
        e(f"    s_waitcnt vmcnt({5 if tap + 2 <= 8 else 0})")
        e("    s_barrier")
        if tap + 3 <= 8:
            emit_wdma(tap + 3)
    e("    s_waitcnt lgkmcnt(0)")
    nxt = reads_for(s + 1, 1 - buf) if s + 1 < NSTEP else []
    m = 0
    for i in range(7):
        for t in range(3):
            acc = ACC + (i * 3 + t) * 4
            a = WF[buf] + t * 4
            b = PA[buf] + i * 4
            c = "0" if s == 0 else f"v[{acc}:{acc+3}]"
            e(f"    v_mfma_f32_16x16x32_bf16 v[{acc}:{acc+3}], v[{a}:{a+3}], v[{b}:{b+3}], {c}")
            if m < len(nxt):
                e(nxt[m])
            m += 1

if DEBUG:
    e("    s_memtime s[48:49]")
e("    s_nop 7")
e("    s_nop 7")
for i in range(7):
    a0 = ACC + i * 12
    st = V_ST + (i % 2) * 6
    for q in range(6):
        e(f"    v_cvt_pk_bf16_f32 v{st+q}, v{a0+2*q}, v{a0+2*q+1}")
    e(f"    s_add_u32 s{S_T0}, s{S_OBASE}, {i*224*192}")
    e(f"    buffer_store_dwordx4 v[{st}:{st+3}], v{V_O1}, s[{S_O}:{S_O+3}], s{S_T0} offen")
    e(f"    buffer_store_dwordx2 v[{st+4}:{st+5}], v{V_O2}, s[{S_O}:{S_O+3}], s{S_T0} offen")
if DEBUG:
    e("    s_waitcnt vmcnt(0)")
    e("    s_memtime s[50:51]")
    e("    s_memrealtime s[52:53]")
    e("    s_waitcnt lgkmcnt(0)")
    e("    s_mov_b32 s56, s36")
    e("    s_mov_b32 s57, s37")
    e("    s_mov_b32 s58, 256")
    e("    s_mov_b32 s59, 0x00020000")
    e("    s_not_b32 s40, s40")
    e("    s_sub_u32 s44, s44, s42")
    e("    s_sub_u32 s60, s60, s42")
    e("    s_sub_u32 s62, s62, s42")
    e("    s_sub_u32 s46, s46, s42")
    e("    s_sub_u32 s48, s48, s42")
    e("    s_sub_u32 s50, s50, s42")
    e("    v_mov_b32 v20, s60")
    e("    v_mov_b32 v21, s62")
    e("    v_mov_b32 v22, s44")
    e("    v_mov_b32 v23, s46")
    e("    v_mov_b32 v24, s48")
    e("    v_mov_b32 v25, s50")
    e("    v_mov_b32 v26, 0")
    e("    s_mov_b64 exec, 1")
    for q in range(6):
        e(f"    buffer_atomic_umax v{20+q}, v26, s[56:59], 0 offen offset:{4*q}")
    e("    v_not_b32 v20, v20")
    e("    v_not_b32 v21, v21")
    e("    v_not_b32 v22, v22")
    e("    v_not_b32 v23, v23")
    e("    v_not_b32 v24, v24")
    e("    v_not_b32 v25, v25")
    for q in range(0,6):
        e(f"    buffer_atomic_umax v{20+q}, v26, s[56:59], 0 offen offset:{24+4*q}")
e("L_done:")
e("    s_endpgm")
e('.section .rodata,"a"')
e(".p2align 6")
e(".amdhsa_kernel standalone__dilated_atrous__vision_kernel")
e(f"  .amdhsa_next_free_vgpr {NVGPR}")
e("  .amdhsa_next_free_sgpr 64")
e(f"  .amdhsa_accum_offset {NVGPR}")
e("  .amdhsa_group_segment_fixed_size 0")
e("  .amdhsa_kernarg_size 40")
e("  .amdhsa_user_sgpr_count 2")
e("  .amdhsa_user_sgpr_kernarg_segment_ptr 1")
e("  .amdhsa_system_sgpr_workgroup_id_x 1")
e(".end_amdhsa_kernel")

path = sys.argv[1] if len(sys.argv) > 1 else "standalone__dilated_atrous__vision.s"
open(path, "w").write("\n".join(out) + "\n")
print("wrote", path, len(out), "lines")
```

```python
import sys

H = W = 224
C = 96
TH, TW = 14, 16
HR, HC = TH + 4, TW + 4
PSTR = 96
PLANE = HR * HC * PSTR
WB = 3 * PLANE
CH = 6144
NSLOT = 9
LDS_TOTAL = WB + NSLOT * CH
XBYTES = H * W * C * 2
WBYTES = 9 * 96 * 96 * 2
BIG = 0x40000000

out = []
DEBUG = len(sys.argv) > 2
def e(s=""):
    out.append(s)

HEADER = open("standalone__dilated_atrous__vision.s.ref").read().split("; Override launch")[0]
e(HEADER.rstrip())
e(f"; @launch grid=(224,1,1) block=(256,1,1) lds={LDS_TOTAL}")
e('.amdgcn_target "amdgcn-amd-amdhsa--gfx950"')
e(".text")
e(".globl standalone__dilated_atrous__vision_kernel")
e(".p2align 8")
e(".type standalone__dilated_atrous__vision_kernel,@function")
e("standalone__dilated_atrous__vision_kernel:")

S_X, S_Wt, S_O = 8, 12, 16
S_WAVE = 20
S_Y0, S_X0, S_TX = 21, 22, 23
S_T0, S_T1, S_T2, S_T3 = 24, 25, 26, 27
S_M0 = 28
S_WOFF = 30
S_OBASE = 31
S_BIG = 32
S_ADJ = 33
S_PMASK = 36
S_W9 = 38
S_GOFF = 40
S_LOFF = 50
V_LANE = 1
V_IE, V_IO = 2, 3
V_WOFF = 5
V_A0 = 6
V_B01, V_B2 = 9, 10
V_O1, V_O2 = 11, 12
V_T0, V_T1, V_T2, V_T3, V_T4, V_T5 = 13, 14, 15, 16, 17, 18
V_ST = 20
ACC = 64
PA = [148, 176]
WF = [204, 216]
NVGPR = 228

e("    s_cmp_ge_u32 s2, 224")
e("    s_cbranch_scc1 L_done")
if DEBUG:
    e("    s_memtime s[70:71]")
    e("    s_load_dwordx2 s[68:69], s[0:1], 24")
e("    s_load_dwordx4 s[4:7], s[0:1], 0")
e("    s_load_dwordx2 s[34:35], s[0:1], 16")
e(f"    v_and_b32 v{V_LANE}, 63, v0")
e(f"    v_lshrrev_b32 v{V_T0}, 6, v0")
e("    s_nop 0")
e(f"    v_readfirstlane_b32 s{S_WAVE}, v{V_T0}")
e(f"    s_and_b32 s{S_T3}, s2, 7")
e(f"    s_lshr_b32 s{S_T2}, s2, 3")
e(f"    s_cmp_ge_u32 s{S_T2}, 14")
e(f"    s_cselect_b32 s{S_T1}, 1, 0")
e(f"    s_cselect_b32 s{S_T0}, 14, 0")
e(f"    s_sub_u32 s{S_TX}, s{S_T2}, s{S_T0}")
e(f"    s_lshl_b32 s{S_T3}, s{S_T3}, 1")
e(f"    s_add_u32 s{S_T1}, s{S_T1}, s{S_T3}")
e(f"    s_mul_i32 s{S_Y0}, s{S_T1}, {TH}")
e(f"    s_lshl_b32 s{S_X0}, s{S_TX}, 4")
e(f"    s_mov_b32 s{S_BIG}, {BIG}")
e(f"    s_cmp_eq_u32 s{S_TX}, 0")
e(f"    s_cselect_b32 s{S_ADJ}, 384, 0")
mask = 0
for l in range(60):
    if l % 6 < 4:
        mask |= 1 << l
e(f"    s_mov_b32 s{S_PMASK}, 0x{mask & 0xffffffff:08x}")
e(f"    s_mov_b32 s{S_PMASK+1}, 0x{mask >> 32:08x}")
e(f"    v_mul_u32_u24 v{V_T0}, 10923, v{V_LANE}")
e(f"    v_lshrrev_b32 v{V_T0}, 16, v{V_T0}")
e(f"    v_mul_u32_u24 v{V_T1}, 6, v{V_T0}")
e(f"    v_sub_u32 v{V_T1}, v{V_LANE}, v{V_T1}")
e(f"    v_mul_u32_u24 v{V_T2}, 192, v{V_T0}")
e(f"    v_lshl_add_u32 v{V_T2}, v{V_T1}, 4, v{V_T2}")
e(f"    v_mov_b32 v{V_T3}, {BIG}")
e(f"    v_mov_b32 v{V_T4}, v{V_T2}")
e(f"    v_mov_b32 v{V_T5}, v{V_T2}")
e(f"    s_cmp_eq_u32 s{S_TX}, 0")
e("    s_cbranch_scc0 L_notleft")
e(f"    v_subrev_u32 v{V_T1}, 384, v{V_T2}")
e(f"    v_cmp_lt_u32 vcc, 1, v{V_T0}")
e("    s_nop 1")
e(f"    v_cndmask_b32 v{V_T4}, v{V_T3}, v{V_T1}, vcc")
e("L_notleft:")
e(f"    s_cmp_eq_u32 s{S_TX}, 13")
e("    s_cbranch_scc0 L_notright")
e(f"    v_cmp_gt_u32 vcc, 8, v{V_T0}")
e("    s_nop 1")
e(f"    v_cndmask_b32 v{V_T5}, v{V_T3}, v{V_T2}, vcc")
e("L_notright:")
e(f"    s_and_b32 s{S_T0}, s{S_WAVE}, 1")
e(f"    s_cmp_eq_u32 s{S_T0}, 0")
e("    s_cbranch_scc0 L_oddwave")
e(f"    v_mov_b32 v{V_IE}, v{V_T4}")
e(f"    v_mov_b32 v{V_IO}, v{V_T5}")
e("    s_branch L_evod")
e("L_oddwave:")
e(f"    v_mov_b32 v{V_IE}, v{V_T5}")
e(f"    v_mov_b32 v{V_IO}, v{V_T4}")
e("L_evod:")
e(f"    v_lshlrev_b32 v{V_WOFF}, 4, v{V_LANE}")
e(f"    s_mul_i32 s{S_WOFF}, s{S_WAVE}, 1536")
e(f"    s_mul_i32 s{S_W9}, s{S_WAVE}, 9")
e("    s_waitcnt lgkmcnt(0)")
for (r, lo, n) in ((S_X, 4, XBYTES), (S_Wt, 6, WBYTES), (S_O, 34, XBYTES)):
    e(f"    s_mov_b32 s{r}, s{lo}")
    e(f"    s_mov_b32 s{r+1}, s{lo+1}")
    e(f"    s_mov_b32 s{r+2}, {n}")
    e(f"    s_mov_b32 s{r+3}, 0x00020000")

queue = []

def wait_for(tags):
    last = -1
    for i, t in enumerate(queue):
        if t in tags:
            last = i
    n = len(queue) - 1 - last
    assert n <= 63
    e(f"    s_waitcnt vmcnt({n})")

def emit_wchunk(c):
    ks, tap = divmod(c, 9)
    slot = c % NSLOT
    goff = (tap * 96 + ks * 32) * 192
    e(f"    s_add_u32 s{S_T2}, s{S_WOFF}, {goff}")
    e(f"    s_add_u32 s{S_M0}, s{S_WOFF}, {WB + slot*CH}")
    e(f"    s_mov_b32 m0, s{S_M0}")
    e("    s_nop 0")
    e(f"    buffer_load_dwordx4 v{V_WOFF}, s[{S_Wt}:{S_Wt+3}], s{S_T2} offen lds")
    e("    s_mov_b32 exec_hi, 0")
    e(f"    buffer_load_dwordx4 v{V_WOFF}, s[{S_Wt}:{S_Wt+3}], s{S_T2} offen offset:1024 lds")
    e("    s_mov_b32 exec_hi, -1")
    queue.extend([("W", c)] * 2)

def emit_plane(p, first):
    e(f"    s_mov_b64 exec, s[{S_PMASK}:{S_PMASK+1}]")
    for i in range(9):
        if first:
            e(f"    s_add_u32 s{S_T0}, s{S_W9}, {i}")
            e(f"    s_lshr_b32 s{S_T1}, s{S_T0}, 1")
            e(f"    s_and_b32 s{S_T0}, s{S_T0}, 1")
            e(f"    s_mul_i32 s{S_T3}, s{S_T1}, 20")
            e(f"    s_mul_i32 s{S_T2}, s{S_T0}, 10")
            e(f"    s_add_u32 s{S_T3}, s{S_T3}, s{S_T2}")
            e(f"    s_mul_i32 s{S_LOFF+i}, s{S_T3}, {PSTR}")
            e(f"    s_add_u32 s{S_T1}, s{S_T1}, s{S_Y0}")
            e(f"    s_sub_u32 s{S_T1}, s{S_T1}, 2")
            e(f"    s_mul_i32 s{S_T3}, s{S_T1}, 224")
            e(f"    s_add_u32 s{S_T3}, s{S_T3}, s{S_X0}")
            e(f"    s_add_u32 s{S_T3}, s{S_T3}, s{S_T2}")
            e(f"    s_sub_u32 s{S_T3}, s{S_T3}, 2")
            e(f"    s_mul_i32 s{S_T3}, s{S_T3}, 192")
            e(f"    s_cmp_eq_u32 s{S_T0}, 0")
            e(f"    s_cselect_b32 s{S_T2}, s{S_ADJ}, 0")
            e(f"    s_add_u32 s{S_T3}, s{S_T3}, s{S_T2}")
            e(f"    s_cmp_lt_u32 s{S_T1}, 224")
            e(f"    s_cselect_b32 s{S_GOFF+i}, s{S_T3}, s{S_BIG}")
        v = V_IE if i % 2 == 0 else V_IO
        if p == 0:
            e(f"    s_mov_b32 m0, s{S_LOFF+i}")
            e("    s_nop 0")
            e(f"    buffer_load_dwordx4 v{v}, s[{S_X}:{S_X+3}], s{S_GOFF+i} offen lds")
        else:
            e(f"    s_add_u32 s{S_M0}, s{S_LOFF+i}, {p*PLANE}")
            e(f"    s_add_u32 s{S_T2}, s{S_GOFF+i}, {p*64}")
            e(f"    s_mov_b32 m0, s{S_M0}")
            e("    s_nop 0")
            e(f"    buffer_load_dwordx4 v{v}, s[{S_X}:{S_X+3}], s{S_T2} offen lds")
        queue.append(("P", p))
    e("    s_mov_b64 exec, -1")

emit_wchunk(0)
emit_plane(0, True)
for c in range(1, 9):
    emit_wchunk(c)
emit_plane(1, False)

e(f"    v_and_b32 v{V_T0}, 15, v{V_LANE}")
e(f"    v_lshrrev_b32 v{V_T1}, 4, v{V_LANE}")
e(f"    s_and_b32 s{S_T0}, s{S_WAVE}, 1")
e(f"    s_mul_i32 s{S_T0}, s{S_T0}, {7*HC*PSTR}")
e(f"    v_mul_u32_u24 v{V_A0}, {PSTR}, v{V_T0}")
e(f"    v_lshl_add_u32 v{V_A0}, v{V_T1}, 4, v{V_A0}")
e(f"    v_add_u32 v{V_A0}, s{S_T0}, v{V_A0}")
e(f"    v_add_u32 v{V_A0+1}, {PLANE}, v{V_A0}")
e(f"    v_add_u32 v{V_A0+2}, {2*PLANE}, v{V_A0}")
e(f"    v_lshrrev_b32 v{V_T2}, 2, v{V_T0}")
e(f"    v_and_b32 v{V_T3}, 3, v{V_T0}")
e(f"    v_lshl_add_u32 v{V_T2}, v{V_T1}, 3, v{V_T2}")
e(f"    v_mul_u32_u24 v{V_T2}, 192, v{V_T2}")
e(f"    s_lshr_b32 s{S_T1}, s{S_WAVE}, 1")
e(f"    s_mul_i32 s{S_T1}, s{S_T1}, 96")
e(f"    s_add_u32 s{S_T1}, s{S_T1}, {WB}")
e(f"    v_add_u32 v{V_T2}, s{S_T1}, v{V_T2}")
e(f"    v_lshl_add_u32 v{V_B01}, v{V_T3}, 4, v{V_T2}")
e(f"    v_lshl_add_u32 v{V_B2}, v{V_T3}, 3, v{V_T2}")
e(f"    v_add_u32 v{V_B2}, 64, v{V_B2}")
e(f"    v_mul_u32_u24 v{V_O1}, 192, v{V_T0}")
e(f"    s_lshr_b32 s{S_T1}, s{S_WAVE}, 1")
e(f"    s_mul_i32 s{S_T1}, s{S_T1}, 96")
e(f"    v_add_u32 v{V_O1}, s{S_T1}, v{V_O1}")
e(f"    v_lshl_add_u32 v{V_O2}, v{V_T1}, 3, v{V_O1}")
e(f"    v_add_u32 v{V_O2}, 64, v{V_O2}")
e(f"    v_lshl_add_u32 v{V_O1}, v{V_T1}, 4, v{V_O1}")
e(f"    s_and_b32 s{S_T0}, s{S_WAVE}, 1")
e(f"    s_mul_i32 s{S_T0}, s{S_T0}, 7")
e(f"    s_add_u32 s{S_T0}, s{S_T0}, s{S_Y0}")
e(f"    s_mul_i32 s{S_T0}, s{S_T0}, 224")
e(f"    s_add_u32 s{S_T0}, s{S_T0}, s{S_X0}")
e(f"    s_mul_i32 s{S_OBASE}, s{S_T0}, 192")

def reads_for(step, buf):
    ks, tap = divmod(step, 9)
    ky, kx = divmod(tap, 3)
    slot = step % NSLOT
    r = []
    for t in range(3):
        for half in range(2):
            off = slot * CH + half * 4 * 192 + (8 if t == 1 else 0)
            base = V_B2 if t == 2 else V_B01
            d = WF[buf] + t * 4 + half * 2
            r.append(f"    ds_read_b64_tr_b16 v[{d}:{d+1}], v{base} offset:{off}")
    for i in range(7):
        off = ((i + 2 * ky) * HC + 2 * kx) * PSTR
        d = PA[buf] + i * 4
        r.append(f"    ds_read_b128 v[{d}:{d+3}], v{V_A0+ks} offset:{off}")
    return r

if DEBUG:
    e("    s_memtime s[72:73]")
wait_for({("W", 0), ("P", 0), ("W", 1), ("W", 2)})
e("    s_barrier")
if DEBUG:
    e("    s_memtime s[74:75]")
for r in reads_for(0, 0):
    e(r)
NSTEP = 27
next_w = 9
for s in range(NSTEP):
    buf = s % 2
    if s % 3 == 2 and s < 26 - 2:
        q = s // 3
        need = {("W", c) for c in range(3*q+3, min(3*q+6, 27))}
        for st in range(3*q+3, min(3*q+6, 27)):
            need.add(("P", st // 9))
        wait_for(need)
        e("    s_barrier")
        lim = min(3*q + 10, 26)
        while next_w <= lim:
            emit_wchunk(next_w)
            next_w += 1
        if q == 1:
            emit_plane(2, False)
    e("    s_waitcnt lgkmcnt(0)")
    nxt = reads_for(s + 1, 1 - buf) if s + 1 < NSTEP else []
    m = 0
    for i in range(7):
        for t in range(3):
            acc = ACC + (i * 3 + t) * 4
            a = WF[buf] + t * 4
            b = PA[buf] + i * 4
            c = "0" if s == 0 else f"v[{acc}:{acc+3}]"
            e(f"    v_mfma_f32_16x16x32_bf16 v[{acc}:{acc+3}], v[{a}:{a+3}], v[{b}:{b+3}], {c}")
            if m < len(nxt):
                e(nxt[m])
            m += 1

if DEBUG:
    e("    s_memtime s[76:77]")
e("    s_nop 7")
e("    s_nop 7")
for i in range(7):
    a0 = ACC + i * 12
    st = V_ST + (i % 2) * 6
    for q in range(6):
        e(f"    v_cvt_pk_bf16_f32 v{st+q}, v{a0+2*q}, v{a0+2*q+1}")
    e(f"    s_add_u32 s{S_T0}, s{S_OBASE}, {i*224*192}")
    e(f"    buffer_store_dwordx4 v[{st}:{st+3}], v{V_O1}, s[{S_O}:{S_O+3}], s{S_T0} offen")
    e(f"    buffer_store_dwordx2 v[{st+4}:{st+5}], v{V_O2}, s[{S_O}:{S_O+3}], s{S_T0} offen")
if DEBUG:
    e("    s_waitcnt vmcnt(0)")
    e("    s_memtime s[78:79]")
    e("    s_waitcnt lgkmcnt(0)")
    e("    s_mov_b32 s80, s68")
    e("    s_mov_b32 s81, s69")
    e("    s_mov_b32 s82, 256")
    e("    s_mov_b32 s83, 0x00020000")
    for q in range(4):
        e(f"    s_sub_u32 s{72+2*q}, s{72+2*q}, s70")
        e(f"    v_mov_b32 v{20+q}, s{72+2*q}")
    e("    v_mov_b32 v26, 0")
    e("    s_mov_b64 exec, 1")
    for q in range(4):
        e(f"    buffer_atomic_umax v{20+q}, v26, s[80:83], 0 offen offset:{4*q}")
    for q in range(4):
        e(f"    v_not_b32 v{20+q}, v{20+q}")
    for q in range(4):
        e(f"    buffer_atomic_umax v{20+q}, v26, s[80:83], 0 offen offset:{16+4*q}")
e("L_done:")
e("    s_endpgm")
e('.section .rodata,"a"')
e(".p2align 6")
e(".amdhsa_kernel standalone__dilated_atrous__vision_kernel")
e(f"  .amdhsa_next_free_vgpr {NVGPR}")
e("  .amdhsa_next_free_sgpr 96")
e(f"  .amdhsa_accum_offset {NVGPR}")
e("  .amdhsa_group_segment_fixed_size 0")
e("  .amdhsa_kernarg_size 40")
e("  .amdhsa_user_sgpr_count 2")
e("  .amdhsa_user_sgpr_kernarg_segment_ptr 1")
e("  .amdhsa_system_sgpr_workgroup_id_x 1")
e(".end_amdhsa_kernel")

path = sys.argv[1] if len(sys.argv) > 1 else "standalone__dilated_atrous__vision.s"
open(path, "w").write("\n".join(out) + "\n")
print("wrote", path, len(out), "lines")
```

```python
import sys

H = W = 224
C = 96
TH, TW = 14, 16
HR, HC = TH + 4, TW + 4
PSTR = 96
PLANE = HR * HC * PSTR
WB = 3 * PLANE
CH = 6144
NSLOT = 9
LDS_TOTAL = WB + NSLOT * CH
XBYTES = H * W * C * 2
WBYTES = 9 * 96 * 96 * 2
BIG = 0x40000000

out = []
NPRO_W = 6
CAP = 4
DMA_POS = (2, 7, 12, 17)
DEBUG = len(sys.argv) > 2
def e(s=""):
    out.append(s)

HEADER = open("standalone__dilated_atrous__vision.s.ref").read().split("; Override launch")[0]
e(HEADER.rstrip())
e(f"; @launch grid=(224,1,1) block=(256,1,1) lds={LDS_TOTAL}")
e('.amdgcn_target "amdgcn-amd-amdhsa--gfx950"')
e(".text")
e(".globl standalone__dilated_atrous__vision_kernel")
e(".p2align 8")
e(".type standalone__dilated_atrous__vision_kernel,@function")
e("standalone__dilated_atrous__vision_kernel:")

S_X, S_Wt, S_O = 8, 12, 16
S_WAVE = 20
S_Y0, S_X0, S_TX = 21, 22, 23
S_T0, S_T1, S_T2, S_T3 = 24, 25, 26, 27
S_M0 = 28
S_WOFF = 30
S_OBASE = 31
S_BIG = 32
S_ADJ = 33
S_PMASK = 36
S_W9 = 38
S_GOFF = 40
S_LOFF = 50
V_LANE = 1
V_IE, V_IO = 2, 3
V_WOFF = 5
V_A0 = 6
V_B01, V_B2 = 9, 10
V_O1, V_O2 = 11, 12
V_T0, V_T1, V_T2, V_T3, V_T4, V_T5 = 13, 14, 15, 16, 17, 18
V_ST = 20
ACC = 64
PA = [148, 176]
WF = [204, 216]
NVGPR = 228

e("    s_cmp_ge_u32 s2, 224")
e("    s_cbranch_scc1 L_done")
if DEBUG:
    e("    s_memtime s[70:71]")
    e("    s_load_dwordx2 s[68:69], s[0:1], 24")
e("    s_load_dwordx4 s[4:7], s[0:1], 0")
e("    s_load_dwordx2 s[34:35], s[0:1], 16")
e(f"    v_and_b32 v{V_LANE}, 63, v0")
e(f"    v_lshrrev_b32 v{V_T0}, 6, v0")
e("    s_nop 0")
e(f"    v_readfirstlane_b32 s{S_WAVE}, v{V_T0}")
e(f"    s_and_b32 s{S_T3}, s2, 7")
e(f"    s_lshr_b32 s{S_T2}, s2, 3")
e(f"    s_cmp_ge_u32 s{S_T2}, 14")
e(f"    s_cselect_b32 s{S_T1}, 1, 0")
e(f"    s_cselect_b32 s{S_T0}, 14, 0")
e(f"    s_sub_u32 s{S_TX}, s{S_T2}, s{S_T0}")
e(f"    s_lshl_b32 s{S_T3}, s{S_T3}, 1")
e(f"    s_add_u32 s{S_T1}, s{S_T1}, s{S_T3}")
e(f"    s_mul_i32 s{S_Y0}, s{S_T1}, {TH}")
e(f"    s_lshl_b32 s{S_X0}, s{S_TX}, 4")
e(f"    s_mov_b32 s{S_BIG}, {BIG}")
e(f"    s_cmp_eq_u32 s{S_TX}, 0")
e(f"    s_cselect_b32 s{S_ADJ}, 384, 0")
mask = 0
for l in range(60):
    if l % 6 < 4:
        mask |= 1 << l
e(f"    s_mov_b32 s{S_PMASK}, 0x{mask & 0xffffffff:08x}")
e(f"    s_mov_b32 s{S_PMASK+1}, 0x{mask >> 32:08x}")
e(f"    v_mul_u32_u24 v{V_T0}, 10923, v{V_LANE}")
e(f"    v_lshrrev_b32 v{V_T0}, 16, v{V_T0}")
e(f"    v_mul_u32_u24 v{V_T1}, 6, v{V_T0}")
e(f"    v_sub_u32 v{V_T1}, v{V_LANE}, v{V_T1}")
e(f"    v_mul_u32_u24 v{V_T2}, 192, v{V_T0}")
e(f"    v_lshl_add_u32 v{V_T2}, v{V_T1}, 4, v{V_T2}")
e(f"    v_mov_b32 v{V_T3}, {BIG}")
e(f"    v_mov_b32 v{V_T4}, v{V_T2}")
e(f"    v_mov_b32 v{V_T5}, v{V_T2}")
e(f"    s_cmp_eq_u32 s{S_TX}, 0")
e("    s_cbranch_scc0 L_notleft")
e(f"    v_subrev_u32 v{V_T1}, 384, v{V_T2}")
e(f"    v_cmp_lt_u32 vcc, 1, v{V_T0}")
e("    s_nop 1")
e(f"    v_cndmask_b32 v{V_T4}, v{V_T3}, v{V_T1}, vcc")
e("L_notleft:")
e(f"    s_cmp_eq_u32 s{S_TX}, 13")
e("    s_cbranch_scc0 L_notright")
e(f"    v_cmp_gt_u32 vcc, 8, v{V_T0}")
e("    s_nop 1")
e(f"    v_cndmask_b32 v{V_T5}, v{V_T3}, v{V_T2}, vcc")
e("L_notright:")
e(f"    s_and_b32 s{S_T0}, s{S_WAVE}, 1")
e(f"    s_cmp_eq_u32 s{S_T0}, 0")
e("    s_cbranch_scc0 L_oddwave")
e(f"    v_mov_b32 v{V_IE}, v{V_T4}")
e(f"    v_mov_b32 v{V_IO}, v{V_T5}")
e("    s_branch L_evod")
e("L_oddwave:")
e(f"    v_mov_b32 v{V_IE}, v{V_T5}")
e(f"    v_mov_b32 v{V_IO}, v{V_T4}")
e("L_evod:")
e(f"    v_lshlrev_b32 v{V_WOFF}, 4, v{V_LANE}")
e(f"    s_mul_i32 s{S_WOFF}, s{S_WAVE}, 1536")
e(f"    s_mul_i32 s{S_W9}, s{S_WAVE}, 9")
def plane_addr_setup():
    for i in range(9):
        e(f"    s_add_u32 s{S_T0}, s{S_W9}, {i}")
        e(f"    s_lshr_b32 s{S_T1}, s{S_T0}, 1")
        e(f"    s_and_b32 s{S_T0}, s{S_T0}, 1")
        e(f"    s_mul_i32 s{S_T3}, s{S_T1}, 20")
        e(f"    s_mul_i32 s{S_T2}, s{S_T0}, 10")
        e(f"    s_add_u32 s{S_T3}, s{S_T3}, s{S_T2}")
        e(f"    s_mul_i32 s{S_LOFF+i}, s{S_T3}, {PSTR}")
        e(f"    s_add_u32 s{S_T1}, s{S_T1}, s{S_Y0}")
        e(f"    s_sub_u32 s{S_T1}, s{S_T1}, 2")
        e(f"    s_mul_i32 s{S_T3}, s{S_T1}, 224")
        e(f"    s_add_u32 s{S_T3}, s{S_T3}, s{S_X0}")
        e(f"    s_add_u32 s{S_T3}, s{S_T3}, s{S_T2}")
        e(f"    s_sub_u32 s{S_T3}, s{S_T3}, 2")
        e(f"    s_mul_i32 s{S_T3}, s{S_T3}, 192")
        e(f"    s_cmp_eq_u32 s{S_T0}, 0")
        e(f"    s_cselect_b32 s{S_T2}, s{S_ADJ}, 0")
        e(f"    s_add_u32 s{S_T3}, s{S_T3}, s{S_T2}")
        e(f"    s_cmp_lt_u32 s{S_T1}, 224")
        e(f"    s_cselect_b32 s{S_GOFF+i}, s{S_T3}, s{S_BIG}")

plane_addr_setup()
e("    s_waitcnt lgkmcnt(0)")
for (r, lo, n) in ((S_X, 4, XBYTES), (S_Wt, 6, WBYTES), (S_O, 34, XBYTES)):
    e(f"    s_mov_b32 s{r}, s{lo}")
    e(f"    s_mov_b32 s{r+1}, s{lo+1}")
    e(f"    s_mov_b32 s{r+2}, {n}")
    e(f"    s_mov_b32 s{r+3}, 0x00020000")

queue = []

def wait_for(tags):
    last = -1
    for i, t in enumerate(queue):
        if t in tags:
            last = i
    n = len(queue) - 1 - last
    assert n <= 63
    e(f"    s_waitcnt vmcnt({n})")

def emit_wchunk(c):
    ks, tap = divmod(c, 9)
    slot = c % NSLOT
    goff = (tap * 96 + ks * 32) * 192
    e(f"    s_add_u32 s{S_T2}, s{S_WOFF}, {goff}")
    e(f"    s_add_u32 s{S_M0}, s{S_WOFF}, {WB + slot*CH}")
    e(f"    s_mov_b32 m0, s{S_M0}")
    e("    s_nop 0")
    e(f"    buffer_load_dwordx4 v{V_WOFF}, s[{S_Wt}:{S_Wt+3}], s{S_T2} offen lds")
    e("    s_mov_b32 exec_hi, 0")
    e(f"    buffer_load_dwordx4 v{V_WOFF}, s[{S_Wt}:{S_Wt+3}], s{S_T2} offen offset:1024 lds")
    e("    s_mov_b32 exec_hi, -1")
    queue.extend([("W", c)] * 2)

def emit_plane_instr(p, i):
    v = V_IE if i % 2 == 0 else V_IO
    e(f"    s_mov_b64 exec, s[{S_PMASK}:{S_PMASK+1}]")
    if p == 0:
        e(f"    s_mov_b32 m0, s{S_LOFF+i}")
        e("    s_nop 0")
        e(f"    buffer_load_dwordx4 v{v}, s[{S_X}:{S_X+3}], s{S_GOFF+i} offen lds")
    else:
        e(f"    s_add_u32 s{S_M0}, s{S_LOFF+i}, {p*PLANE}")
        e(f"    s_add_u32 s{S_T2}, s{S_GOFF+i}, {p*64}")
        e(f"    s_mov_b32 m0, s{S_M0}")
        e("    s_nop 0")
        e(f"    buffer_load_dwordx4 v{v}, s[{S_X}:{S_X+3}], s{S_T2} offen lds")
    e("    s_mov_b64 exec, -1")
    queue.append(("P", p))

emit_wchunk(0)
for i in range(9):
    emit_plane_instr(0, i)
for c in range(1, NPRO_W):
    emit_wchunk(c)

items = []
for c in range(NPRO_W, 27):
    q = (c - 3) // 3
    dl = 3 * q + 2
    if c <= 8:
        ea = 0
    else:
        qq = -(-(c - 10) // 3)
        ea = 3 * qq + 2
    items.append((dl, ea, "W", c))
for i in range(9):
    items.append((8 - 2, 0, "P", (1, i)))
    items.append((17 - 2, 4, "P", (2, i)))
items.sort(key=lambda t: (t[0], t[1]))

e(f"    v_and_b32 v{V_T0}, 15, v{V_LANE}")
e(f"    v_lshrrev_b32 v{V_T1}, 4, v{V_LANE}")
e(f"    s_and_b32 s{S_T0}, s{S_WAVE}, 1")
e(f"    s_mul_i32 s{S_T0}, s{S_T0}, {7*HC*PSTR}")
e(f"    v_mul_u32_u24 v{V_A0}, {PSTR}, v{V_T0}")
e(f"    v_lshl_add_u32 v{V_A0}, v{V_T1}, 4, v{V_A0}")
e(f"    v_add_u32 v{V_A0}, s{S_T0}, v{V_A0}")
e(f"    v_add_u32 v{V_A0+1}, {PLANE}, v{V_A0}")
e(f"    v_add_u32 v{V_A0+2}, {2*PLANE}, v{V_A0}")
e(f"    v_lshrrev_b32 v{V_T2}, 2, v{V_T0}")
e(f"    v_and_b32 v{V_T3}, 3, v{V_T0}")
e(f"    v_lshl_add_u32 v{V_T2}, v{V_T1}, 3, v{V_T2}")
e(f"    v_mul_u32_u24 v{V_T2}, 192, v{V_T2}")
e(f"    s_lshr_b32 s{S_T1}, s{S_WAVE}, 1")
e(f"    s_mul_i32 s{S_T1}, s{S_T1}, 96")
e(f"    s_add_u32 s{S_T1}, s{S_T1}, {WB}")
e(f"    v_add_u32 v{V_T2}, s{S_T1}, v{V_T2}")
e(f"    v_lshl_add_u32 v{V_B01}, v{V_T3}, 4, v{V_T2}")
e(f"    v_lshl_add_u32 v{V_B2}, v{V_T3}, 3, v{V_T2}")
e(f"    v_add_u32 v{V_B2}, 64, v{V_B2}")
e(f"    v_mul_u32_u24 v{V_O1}, 192, v{V_T0}")
e(f"    s_lshr_b32 s{S_T1}, s{S_WAVE}, 1")
e(f"    s_mul_i32 s{S_T1}, s{S_T1}, 96")
e(f"    v_add_u32 v{V_O1}, s{S_T1}, v{V_O1}")
e(f"    v_lshl_add_u32 v{V_O2}, v{V_T1}, 3, v{V_O1}")
e(f"    v_add_u32 v{V_O2}, 64, v{V_O2}")
e(f"    v_lshl_add_u32 v{V_O1}, v{V_T1}, 4, v{V_O1}")
e(f"    s_and_b32 s{S_T0}, s{S_WAVE}, 1")
e(f"    s_mul_i32 s{S_T0}, s{S_T0}, 7")
e(f"    s_add_u32 s{S_T0}, s{S_T0}, s{S_Y0}")
e(f"    s_mul_i32 s{S_T0}, s{S_T0}, 224")
e(f"    s_add_u32 s{S_T0}, s{S_T0}, s{S_X0}")
e(f"    s_mul_i32 s{S_OBASE}, s{S_T0}, 192")

def reads_for(step, buf):
    ks, tap = divmod(step, 9)
    ky, kx = divmod(tap, 3)
    slot = step % NSLOT
    r = []
    for t in range(3):
        for half in range(2):
            off = slot * CH + half * 4 * 192 + (8 if t == 1 else 0)
            base = V_B2 if t == 2 else V_B01
            d = WF[buf] + t * 4 + half * 2
            r.append(f"    ds_read_b64_tr_b16 v[{d}:{d+1}], v{base} offset:{off}")
    for i in range(7):
        off = ((i + 2 * ky) * HC + 2 * kx) * PSTR
        d = PA[buf] + i * 4
        r.append(f"    ds_read_b128 v[{d}:{d+3}], v{V_A0+ks} offset:{off}")
    return r

if DEBUG:
    e("    s_memtime s[72:73]")
wait_for({("W", 0), ("P", 0), ("W", 1), ("W", 2)})
e("    s_barrier")
if DEBUG:
    e("    s_memtime s[74:75]")
for r in reads_for(0, 0):
    e(r)
NSTEP = 27
sched = []
next_w = 9
for s in range(NSTEP):
    buf = s % 2
    if s % 3 == 2 and s < 26 - 2:
        q = s // 3
        need = {("W", c) for c in range(3*q+3, min(3*q+6, 27))}
        for st in range(3*q+3, min(3*q+6, 27)):
            need.add(("P", st // 9))
        wait_for(need)
        e("    s_barrier")
    e("    s_waitcnt lgkmcnt(0)")
    nxt = reads_for(s + 1, 1 - buf) if s + 1 < NSTEP else []
    m = 0
    cap = CAP
    for i in range(7):
        for t in range(3):
            acc = ACC + (i * 3 + t) * 4
            a = WF[buf] + t * 4
            b = PA[buf] + i * 4
            c = "0" if s == 0 else f"v[{acc}:{acc+3}]"
            e(f"    v_mfma_f32_16x16x32_bf16 v[{acc}:{acc+3}], v[{a}:{a+3}], v[{b}:{b+3}], {c}")
            if m < len(nxt):
                e(nxt[m])
            if m in DMA_POS and cap > 0:
                for it in items:
                    if it[1] <= s:
                        if it[2] == "W":
                            emit_wchunk(it[3]); cap -= 2
                        else:
                            emit_plane_instr(*it[3]); cap -= 1
                        sched.append((s, it[2], it[3]))
                        items.remove(it)
                        break
            m += 1

assert not items, items
if DEBUG:
    e("    s_memtime s[76:77]")
e("    s_nop 7")
e("    s_nop 7")
for i in range(7):
    a0 = ACC + i * 12
    st = V_ST + (i % 2) * 6
    for q in range(6):
        e(f"    v_cvt_pk_bf16_f32 v{st+q}, v{a0+2*q}, v{a0+2*q+1}")
    e(f"    s_add_u32 s{S_T0}, s{S_OBASE}, {i*224*192}")
    e(f"    buffer_store_dwordx4 v[{st}:{st+3}], v{V_O1}, s[{S_O}:{S_O+3}], s{S_T0} offen")
    e(f"    buffer_store_dwordx2 v[{st+4}:{st+5}], v{V_O2}, s[{S_O}:{S_O+3}], s{S_T0} offen")
if DEBUG:
    e("    s_waitcnt vmcnt(0)")
    e("    s_memtime s[78:79]")
    e("    s_waitcnt lgkmcnt(0)")
    e("    s_mov_b32 s80, s68")
    e("    s_mov_b32 s81, s69")
    e("    s_mov_b32 s82, 256")
    e("    s_mov_b32 s83, 0x00020000")
    for q in range(4):
        e(f"    s_sub_u32 s{72+2*q}, s{72+2*q}, s70")
        e(f"    v_mov_b32 v{20+q}, s{72+2*q}")
    e("    v_mov_b32 v26, 0")
    e("    s_mov_b64 exec, 1")
    for q in range(4):
        e(f"    buffer_atomic_umax v{20+q}, v26, s[80:83], 0 offen offset:{4*q}")
    for q in range(4):
        e(f"    v_not_b32 v{20+q}, v{20+q}")
    for q in range(4):
        e(f"    buffer_atomic_umax v{20+q}, v26, s[80:83], 0 offen offset:{16+4*q}")
e("L_done:")
e("    s_endpgm")
e('.section .rodata,"a"')
e(".p2align 6")
e(".amdhsa_kernel standalone__dilated_atrous__vision_kernel")
e(f"  .amdhsa_next_free_vgpr {NVGPR}")
e("  .amdhsa_next_free_sgpr 96")
e(f"  .amdhsa_accum_offset {NVGPR}")
e("  .amdhsa_group_segment_fixed_size 0")
e("  .amdhsa_kernarg_size 40")
e("  .amdhsa_user_sgpr_count 2")
e("  .amdhsa_user_sgpr_kernarg_segment_ptr 1")
e("  .amdhsa_system_sgpr_workgroup_id_x 1")
e(".end_amdhsa_kernel")

path = sys.argv[1] if len(sys.argv) > 1 else "standalone__dilated_atrous__vision.s"
open(path, "w").write("\n".join(out) + "\n")
print("wrote", path, len(out), "lines")

print(sched)
```

```python
import sys

H = W = 224
C = 96
TH, TW = 14, 16
HR, HC = TH + 4, TW + 4
PSTR = 96
PLANE = HR * HC * PSTR
WB = 3 * PLANE
CH = 6144
NSLOT = 9
LDS_TOTAL = WB + NSLOT * CH
XBYTES = H * W * C * 2
WBYTES = 9 * 96 * 96 * 2
BIG = 0x40000000

out = []
NPRO_W = 6
CAP = 4
DMA_POS = (2, 7, 12, 17)
DEBUG = len(sys.argv) > 2
def e(s=""):
    out.append(s)

HEADER = open("standalone__dilated_atrous__vision.s.ref").read().split("; Override launch")[0]
e(HEADER.rstrip())
e(f"; @launch grid=(224,1,1) block=(256,1,1) lds={LDS_TOTAL}")
e('.amdgcn_target "amdgcn-amd-amdhsa--gfx950"')
e(".text")
e(".globl standalone__dilated_atrous__vision_kernel")
e(".p2align 8")
e(".type standalone__dilated_atrous__vision_kernel,@function")
e("standalone__dilated_atrous__vision_kernel:")

S_X, S_Wt, S_O = 8, 12, 16
S_WAVE = 20
S_Y0, S_X0, S_TX = 21, 22, 23
S_T0, S_T1, S_T2, S_T3 = 24, 25, 26, 27
S_M0 = 28
S_WOFF = 30
S_OBASE = 31
S_BIG = 32
S_ADJ = 33
S_PMASK = 36
S_W9 = 38
S_GOFF = 40
S_LOFF = 50
V_LANE = 1
V_IE, V_IO = 2, 3
V_WOFF = 5
V_A0 = 6
V_B01, V_B2 = 9, 10
V_O1, V_O2 = 11, 12
V_T0, V_T1, V_T2, V_T3, V_T4, V_T5 = 13, 14, 15, 16, 17, 18
V_ST = 20
ACC = 64
PA = [148, 176]
WF = [204, 216]
NVGPR = 228

e("    s_cmp_ge_u32 s2, 224")
e("    s_cbranch_scc1 L_done")
if DEBUG:
    e("    s_memtime s[70:71]")
    e("    s_load_dwordx2 s[68:69], s[0:1], 24")
e("    s_load_dwordx4 s[4:7], s[0:1], 0")
e("    s_load_dwordx2 s[34:35], s[0:1], 16")
e(f"    v_and_b32 v{V_LANE}, 63, v0")
e(f"    v_lshrrev_b32 v{V_T0}, 6, v0")
e("    s_nop 0")
e(f"    v_readfirstlane_b32 s{S_WAVE}, v{V_T0}")
e(f"    s_and_b32 s{S_T3}, s2, 7")
e(f"    s_lshr_b32 s{S_T2}, s2, 3")
e(f"    s_cmp_ge_u32 s{S_T2}, 14")
e(f"    s_cselect_b32 s{S_T1}, 1, 0")
e(f"    s_cselect_b32 s{S_T0}, 14, 0")
e(f"    s_sub_u32 s{S_TX}, s{S_T2}, s{S_T0}")
e(f"    s_lshl_b32 s{S_T3}, s{S_T3}, 1")
e(f"    s_add_u32 s{S_T1}, s{S_T1}, s{S_T3}")
e(f"    s_mul_i32 s{S_Y0}, s{S_T1}, {TH}")
e(f"    s_lshl_b32 s{S_X0}, s{S_TX}, 4")
e(f"    s_mov_b32 s{S_BIG}, {BIG}")
e(f"    s_cmp_eq_u32 s{S_TX}, 0")
e(f"    s_cselect_b32 s{S_ADJ}, 384, 0")
mask = 0
for l in range(60):
    if l % 6 < 4:
        mask |= 1 << l
e(f"    s_mov_b32 s{S_PMASK}, 0x{mask & 0xffffffff:08x}")
e(f"    s_mov_b32 s{S_PMASK+1}, 0x{mask >> 32:08x}")
e(f"    v_mul_u32_u24 v{V_T0}, 10923, v{V_LANE}")
e(f"    v_lshrrev_b32 v{V_T0}, 16, v{V_T0}")
e(f"    v_mul_u32_u24 v{V_T1}, 6, v{V_T0}")
e(f"    v_sub_u32 v{V_T1}, v{V_LANE}, v{V_T1}")
e(f"    v_mul_u32_u24 v{V_T2}, 192, v{V_T0}")
e(f"    v_lshl_add_u32 v{V_T2}, v{V_T1}, 4, v{V_T2}")
e(f"    v_mov_b32 v{V_T3}, {BIG}")
e(f"    v_mov_b32 v{V_T4}, v{V_T2}")
e(f"    v_mov_b32 v{V_T5}, v{V_T2}")
e(f"    s_cmp_eq_u32 s{S_TX}, 0")
e("    s_cbranch_scc0 L_notleft")
e(f"    v_subrev_u32 v{V_T1}, 384, v{V_T2}")
e(f"    v_cmp_lt_u32 vcc, 1, v{V_T0}")
e("    s_nop 1")
e(f"    v_cndmask_b32 v{V_T4}, v{V_T3}, v{V_T1}, vcc")
e("L_notleft:")
e(f"    s_cmp_eq_u32 s{S_TX}, 13")
e("    s_cbranch_scc0 L_notright")
e(f"    v_cmp_gt_u32 vcc, 8, v{V_T0}")
e("    s_nop 1")
e(f"    v_cndmask_b32 v{V_T5}, v{V_T3}, v{V_T2}, vcc")
e("L_notright:")
e(f"    s_and_b32 s{S_T0}, s{S_WAVE}, 1")
e(f"    s_cmp_eq_u32 s{S_T0}, 0")
e("    s_cbranch_scc0 L_oddwave")
e(f"    v_mov_b32 v{V_IE}, v{V_T4}")
e(f"    v_mov_b32 v{V_IO}, v{V_T5}")
e("    s_branch L_evod")
e("L_oddwave:")
e(f"    v_mov_b32 v{V_IE}, v{V_T5}")
e(f"    v_mov_b32 v{V_IO}, v{V_T4}")
e("L_evod:")
e(f"    v_lshlrev_b32 v{V_WOFF}, 4, v{V_LANE}")
e(f"    s_mul_i32 s{S_WOFF}, s{S_WAVE}, 1536")
e(f"    s_mul_i32 s{S_W9}, s{S_WAVE}, 9")
def plane_addr_setup():
    for i in range(9):
        e(f"    s_add_u32 s{S_T0}, s{S_W9}, {i}")
        e(f"    s_lshr_b32 s{S_T1}, s{S_T0}, 1")
        e(f"    s_and_b32 s{S_T0}, s{S_T0}, 1")
        e(f"    s_mul_i32 s{S_T3}, s{S_T1}, 20")
        e(f"    s_mul_i32 s{S_T2}, s{S_T0}, 10")
        e(f"    s_add_u32 s{S_T3}, s{S_T3}, s{S_T2}")
        e(f"    s_mul_i32 s{S_LOFF+i}, s{S_T3}, {PSTR}")
        e(f"    s_add_u32 s{S_T1}, s{S_T1}, s{S_Y0}")
        e(f"    s_sub_u32 s{S_T1}, s{S_T1}, 2")
        e(f"    s_mul_i32 s{S_T3}, s{S_T1}, 224")
        e(f"    s_add_u32 s{S_T3}, s{S_T3}, s{S_X0}")
        e(f"    s_add_u32 s{S_T3}, s{S_T3}, s{S_T2}")
        e(f"    s_sub_u32 s{S_T3}, s{S_T3}, 2")
        e(f"    s_mul_i32 s{S_T3}, s{S_T3}, 192")
        e(f"    s_cmp_eq_u32 s{S_T0}, 0")
        e(f"    s_cselect_b32 s{S_T2}, s{S_ADJ}, 0")
        e(f"    s_add_u32 s{S_T3}, s{S_T3}, s{S_T2}")
        e(f"    s_cmp_lt_u32 s{S_T1}, 224")
        e(f"    s_cselect_b32 s{S_GOFF+i}, s{S_T3}, s{S_BIG}")

plane_addr_setup()
e("    s_waitcnt lgkmcnt(0)")
for (r, lo, n) in ((S_X, 4, XBYTES), (S_Wt, 6, WBYTES), (S_O, 34, XBYTES)):
    e(f"    s_mov_b32 s{r}, s{lo}")
    e(f"    s_mov_b32 s{r+1}, s{lo+1}")
    e(f"    s_mov_b32 s{r+2}, {n}")
    e(f"    s_mov_b32 s{r+3}, 0x00020000")

queue = []

def wait_for(tags):
    last = -1
    for i, t in enumerate(queue):
        if t in tags:
            last = i
    n = len(queue) - 1 - last
    assert n <= 63
    e(f"    s_waitcnt vmcnt({n})")

def emit_wchunk(c):
    ks, tap = divmod(c, 9)
    slot = c % NSLOT
    goff = (tap * 96 + ks * 32) * 192
    e(f"    s_add_u32 s{S_T2}, s{S_WOFF}, {goff}")
    e(f"    s_add_u32 s{S_M0}, s{S_WOFF}, {WB + slot*CH}")
    e(f"    s_mov_b32 m0, s{S_M0}")
    e("    s_nop 0")
    e(f"    buffer_load_dwordx4 v{V_WOFF}, s[{S_Wt}:{S_Wt+3}], s{S_T2} offen lds")
    e("    s_mov_b32 exec_hi, 0")
    e(f"    buffer_load_dwordx4 v{V_WOFF}, s[{S_Wt}:{S_Wt+3}], s{S_T2} offen offset:1024 lds")
    e("    s_mov_b32 exec_hi, -1")
    queue.extend([("W", c)] * 2)

def emit_plane_instr(p, i):
    v = V_IE if i % 2 == 0 else V_IO
    e(f"    s_mov_b64 exec, s[{S_PMASK}:{S_PMASK+1}]")
    if p == 0:
        e(f"    s_mov_b32 m0, s{S_LOFF+i}")
        e("    s_nop 0")
        e(f"    buffer_load_dwordx4 v{v}, s[{S_X}:{S_X+3}], s{S_GOFF+i} offen lds")
    else:
        e(f"    s_add_u32 s{S_M0}, s{S_LOFF+i}, {p*PLANE}")
        e(f"    s_add_u32 s{S_T2}, s{S_GOFF+i}, {p*64}")
        e(f"    s_mov_b32 m0, s{S_M0}")
        e("    s_nop 0")
        e(f"    buffer_load_dwordx4 v{v}, s[{S_X}:{S_X+3}], s{S_T2} offen lds")
    e("    s_mov_b64 exec, -1")
    queue.append(("P", p))

if DEBUG:
    e("    s_memtime s[86:87]")
emit_wchunk(0)
if DEBUG:
    e("    s_waitcnt vmcnt(0)")
    e("    s_memtime s[88:89]")
for i in range(9):
    emit_plane_instr(0, i)
    if DEBUG and i == 0:
        e("    s_waitcnt vmcnt(0)")
        e("    s_memtime s[90:91]")
if DEBUG:
    e("    s_waitcnt vmcnt(0)")
    e("    s_memtime s[92:93]")
for c in range(1, NPRO_W):
    emit_wchunk(c)

items = []
for c in range(NPRO_W, 27):
    q = (c - 3) // 3
    dl = 3 * q + 2
    if c <= 8:
        ea = 0
    else:
        qq = -(-(c - 10) // 3)
        ea = 3 * qq + 2
    items.append((dl, ea, "W", c))
for i in range(9):
    items.append((8 - 2, 0, "P", (1, i)))
    items.append((17 - 2, 4, "P", (2, i)))
items.sort(key=lambda t: (t[0], t[1]))

e(f"    v_and_b32 v{V_T0}, 15, v{V_LANE}")
e(f"    v_lshrrev_b32 v{V_T1}, 4, v{V_LANE}")
e(f"    s_and_b32 s{S_T0}, s{S_WAVE}, 1")
e(f"    s_mul_i32 s{S_T0}, s{S_T0}, {7*HC*PSTR}")
e(f"    v_mul_u32_u24 v{V_A0}, {PSTR}, v{V_T0}")
e(f"    v_lshl_add_u32 v{V_A0}, v{V_T1}, 4, v{V_A0}")
e(f"    v_add_u32 v{V_A0}, s{S_T0}, v{V_A0}")
e(f"    v_add_u32 v{V_A0+1}, {PLANE}, v{V_A0}")
e(f"    v_add_u32 v{V_A0+2}, {2*PLANE}, v{V_A0}")
e(f"    v_lshrrev_b32 v{V_T2}, 2, v{V_T0}")
e(f"    v_and_b32 v{V_T3}, 3, v{V_T0}")
e(f"    v_lshl_add_u32 v{V_T2}, v{V_T1}, 3, v{V_T2}")
e(f"    v_mul_u32_u24 v{V_T2}, 192, v{V_T2}")
e(f"    s_lshr_b32 s{S_T1}, s{S_WAVE}, 1")
e(f"    s_mul_i32 s{S_T1}, s{S_T1}, 96")
e(f"    s_add_u32 s{S_T1}, s{S_T1}, {WB}")
e(f"    v_add_u32 v{V_T2}, s{S_T1}, v{V_T2}")
e(f"    v_lshl_add_u32 v{V_B01}, v{V_T3}, 4, v{V_T2}")
e(f"    v_lshl_add_u32 v{V_B2}, v{V_T3}, 3, v{V_T2}")
e(f"    v_add_u32 v{V_B2}, 64, v{V_B2}")
e(f"    v_mul_u32_u24 v{V_O1}, 192, v{V_T0}")
e(f"    s_lshr_b32 s{S_T1}, s{S_WAVE}, 1")
e(f"    s_mul_i32 s{S_T1}, s{S_T1}, 96")
e(f"    v_add_u32 v{V_O1}, s{S_T1}, v{V_O1}")
e(f"    v_lshl_add_u32 v{V_O2}, v{V_T1}, 3, v{V_O1}")
e(f"    v_add_u32 v{V_O2}, 64, v{V_O2}")
e(f"    v_lshl_add_u32 v{V_O1}, v{V_T1}, 4, v{V_O1}")
e(f"    s_and_b32 s{S_T0}, s{S_WAVE}, 1")
e(f"    s_mul_i32 s{S_T0}, s{S_T0}, 7")
e(f"    s_add_u32 s{S_T0}, s{S_T0}, s{S_Y0}")
e(f"    s_mul_i32 s{S_T0}, s{S_T0}, 224")
e(f"    s_add_u32 s{S_T0}, s{S_T0}, s{S_X0}")
e(f"    s_mul_i32 s{S_OBASE}, s{S_T0}, 192")

def reads_for(step, buf):
    ks, tap = divmod(step, 9)
    ky, kx = divmod(tap, 3)
    slot = step % NSLOT
    r = []
    for t in range(3):
        for half in range(2):
            off = slot * CH + half * 4 * 192 + (8 if t == 1 else 0)
            base = V_B2 if t == 2 else V_B01
            d = WF[buf] + t * 4 + half * 2
            r.append(f"    ds_read_b64_tr_b16 v[{d}:{d+1}], v{base} offset:{off}")
    for i in range(7):
        off = ((i + 2 * ky) * HC + 2 * kx) * PSTR
        d = PA[buf] + i * 4
        r.append(f"    ds_read_b128 v[{d}:{d+3}], v{V_A0+ks} offset:{off}")
    return r

if DEBUG:
    e("    s_memtime s[72:73]")
wait_for({("W", 0), ("P", 0), ("W", 1), ("W", 2)})
e("    s_barrier")
if DEBUG:
    e("    s_memtime s[74:75]")
for r in reads_for(0, 0):
    e(r)
NSTEP = 27
sched = []
next_w = 9
for s in range(NSTEP):
    buf = s % 2
    if s % 3 == 2 and s < 26 - 2:
        q = s // 3
        need = {("W", c) for c in range(3*q+3, min(3*q+6, 27))}
        for st in range(3*q+3, min(3*q+6, 27)):
            need.add(("P", st // 9))
        wait_for(need)
        e("    s_barrier")
    e("    s_waitcnt lgkmcnt(0)")
    nxt = reads_for(s + 1, 1 - buf) if s + 1 < NSTEP else []
    m = 0
    cap = CAP
    for i in range(7):
        for t in range(3):
            acc = ACC + (i * 3 + t) * 4
            a = WF[buf] + t * 4
            b = PA[buf] + i * 4
            c = "0" if s == 0 else f"v[{acc}:{acc+3}]"
            e(f"    v_mfma_f32_16x16x32_bf16 v[{acc}:{acc+3}], v[{a}:{a+3}], v[{b}:{b+3}], {c}")
            if m < len(nxt):
                e(nxt[m])
            if m in DMA_POS and cap > 0:
                for it in items:
                    if it[1] <= s:
                        if it[2] == "W":
                            emit_wchunk(it[3]); cap -= 2
                        else:
                            emit_plane_instr(*it[3]); cap -= 1
                        sched.append((s, it[2], it[3]))
                        items.remove(it)
                        break
            m += 1

assert not items, items
if DEBUG:
    e("    s_memtime s[76:77]")
e("    s_nop 7")
e("    s_nop 7")
for i in range(7):
    a0 = ACC + i * 12
    st = V_ST + (i % 2) * 6
    for q in range(6):
        e(f"    v_cvt_pk_bf16_f32 v{st+q}, v{a0+2*q}, v{a0+2*q+1}")
    e(f"    s_add_u32 s{S_T0}, s{S_OBASE}, {i*224*192}")
    e(f"    buffer_store_dwordx4 v[{st}:{st+3}], v{V_O1}, s[{S_O}:{S_O+3}], s{S_T0} offen")
    e(f"    buffer_store_dwordx2 v[{st+4}:{st+5}], v{V_O2}, s[{S_O}:{S_O+3}], s{S_T0} offen")
if DEBUG:
    e("    s_waitcnt vmcnt(0)")
    e("    s_memtime s[78:79]")
    e("    s_waitcnt lgkmcnt(0)")
    e("    s_mov_b32 s80, s68")
    e("    s_mov_b32 s81, s69")
    e("    s_mov_b32 s82, 256")
    e("    s_mov_b32 s83, 0x00020000")
    regs = [86, 88, 90, 92, 74, 76, 78]
    for q, r in enumerate(regs):
        e(f"    s_sub_u32 s{r}, s{r}, s70")
        e(f"    v_mov_b32 v{20+q}, s{r}")
    e("    v_mov_b32 v30, 0")
    e("    s_mov_b64 exec, 1")
    for q in range(7):
        e(f"    buffer_atomic_umax v{20+q}, v30, s[80:83], 0 offen offset:{4*q}")
    for q in range(7):
        e(f"    v_not_b32 v{20+q}, v{20+q}")
    for q in range(7):
        e(f"    buffer_atomic_umax v{20+q}, v30, s[80:83], 0 offen offset:{32+4*q}")
e("L_done:")
e("    s_endpgm")
e('.section .rodata,"a"')
e(".p2align 6")
e(".amdhsa_kernel standalone__dilated_atrous__vision_kernel")
e(f"  .amdhsa_next_free_vgpr {NVGPR}")
e("  .amdhsa_next_free_sgpr 96")
e(f"  .amdhsa_accum_offset {NVGPR}")
e("  .amdhsa_group_segment_fixed_size 0")
e("  .amdhsa_kernarg_size 40")
e("  .amdhsa_user_sgpr_count 2")
e("  .amdhsa_user_sgpr_kernarg_segment_ptr 1")
e("  .amdhsa_system_sgpr_workgroup_id_x 1")
e(".end_amdhsa_kernel")

path = sys.argv[1] if len(sys.argv) > 1 else "standalone__dilated_atrous__vision.s"
open(path, "w").write("\n".join(out) + "\n")
print("wrote", path, len(out), "lines")

print(sched)
```

```python
import sys, os

H = W = 224
C = 96
TH, TW = 14, 16
HC = TW + 4
HRA = 20
PSTR = 224
ROWB = HC * PSTR
WB = HRA * ROWB
TAPB = 18432
NSLOT = 4
LDS_TOTAL = WB + NSLOT * TAPB
XBYTES = H * W * C * 2
WBYTES = 9 * TAPB
BIG = 0x40000000

R0 = int(os.environ.get("R0", "4"))
PH2 = [int(x) for x in os.environ.get("PH2", "3").split(",")]
assert R0 + sum(PH2) == 7
DEBUG = len(sys.argv) > 2

out = []
def e(s=""):
    out.append(s)

HEADER = open("standalone__dilated_atrous__vision.s.ref").read().split("; Override launch")[0]
e(HEADER.rstrip())
e(f"; @launch grid=(224,1,1) block=(256,1,1) lds={LDS_TOTAL}")
e('.amdgcn_target "amdgcn-amd-amdhsa--gfx950"')
e(".text")
e(".globl standalone__dilated_atrous__vision_kernel")
e(".p2align 8")
e(".type standalone__dilated_atrous__vision_kernel,@function")
e("standalone__dilated_atrous__vision_kernel:")

S_X, S_Wt, S_O = 8, 12, 16
S_WAVE = 20
S_Y0, S_X0, S_TX = 21, 22, 23
S_T0, S_T1, S_T2, S_T3 = 24, 25, 26, 27
S_M0 = 28
S_ROWOFF = 29
S_WOFF = 30
S_OBASE = 31
S_BIG = 32
S_ADJ = 33
S_RM0 = 36
V_LANE = 1
V_INORM, V_ILEFT, V_IRIGHT = 2, 3, 4
V_WOFF = 5
V_A0, V_A1 = 6, 7
V_B01lo, V_B2lo, V_B01hi, V_B2hi = 8, 9, 10, 11
V_O1, V_O2 = 12, 13
V_T0, V_T1, V_T2, V_T3 = 14, 15, 16, 17
V_ST = 20
ACC1 = 32
ACC2 = ACC1 + R0 * 12
PA = 116
WV = 184

def wreg(step, t):
    if step < 21:
        return "a", step * 12 + t * 4
    return "v", WV + (step - 21) * 12 + t * 4

e("    s_cmp_ge_u32 s2, 224")
e("    s_cbranch_scc1 L_done")
if DEBUG:
    e("    s_memtime s[70:71]")
    e("    s_load_dwordx2 s[68:69], s[0:1], 24")
e("    s_load_dwordx4 s[4:7], s[0:1], 0")
e("    s_load_dwordx2 s[34:35], s[0:1], 16")
e(f"    v_and_b32 v{V_LANE}, 63, v0")
e(f"    v_lshrrev_b32 v{V_T0}, 6, v0")
e("    s_nop 0")
e(f"    v_readfirstlane_b32 s{S_WAVE}, v{V_T0}")
e(f"    s_and_b32 s{S_T3}, s2, 7")
e(f"    s_lshr_b32 s{S_T2}, s2, 3")
e(f"    s_cmp_ge_u32 s{S_T2}, 14")
e(f"    s_cselect_b32 s{S_T1}, 1, 0")
e(f"    s_cselect_b32 s{S_T0}, 14, 0")
e(f"    s_sub_u32 s{S_TX}, s{S_T2}, s{S_T0}")
e(f"    s_lshl_b32 s{S_T3}, s{S_T3}, 1")
e(f"    s_add_u32 s{S_T1}, s{S_T1}, s{S_T3}")
e(f"    s_mul_i32 s{S_Y0}, s{S_T1}, {TH}")
e(f"    s_lshl_b32 s{S_X0}, s{S_TX}, 4")
e(f"    s_mov_b32 s{S_BIG}, {BIG}")
e(f"    s_cmp_eq_u32 s{S_TX}, 0")
e(f"    s_cselect_b32 s{S_ADJ}, 384, 0")
e(f"    v_mul_u32_u24 v{V_T0}, 4682, v{V_LANE}")
e(f"    v_lshrrev_b32 v{V_T0}, 16, v{V_T0}")
e(f"    v_mul_u32_u24 v{V_T1}, 14, v{V_T0}")
e(f"    v_sub_u32 v{V_T1}, v{V_LANE}, v{V_T1}")
e(f"    v_mul_u32_u24 v{V_T2}, 192, v{V_T0}")
e(f"    v_lshl_add_u32 v{V_INORM}, v{V_T1}, 4, v{V_T2}")
e(f"    v_mov_b32 v{V_T3}, {BIG}")
e(f"    v_mov_b32 v{V_ILEFT}, v{V_INORM}")
e(f"    v_mov_b32 v{V_IRIGHT}, v{V_INORM}")
e(f"    s_cmp_eq_u32 s{S_TX}, 0")
e("    s_cbranch_scc0 L_notleft")
e(f"    v_subrev_u32 v{V_T2}, 384, v{V_INORM}")
e(f"    v_cmp_lt_u32 vcc, 1, v{V_T0}")
e("    s_nop 1")
e(f"    v_cndmask_b32 v{V_ILEFT}, v{V_T3}, v{V_T2}, vcc")
e("L_notleft:")
e(f"    s_cmp_eq_u32 s{S_TX}, 13")
e("    s_cbranch_scc0 L_notright")
e(f"    v_cmp_gt_u32 vcc, 2, v{V_T0}")
e("    s_nop 1")
e(f"    v_cndmask_b32 v{V_IRIGHT}, v{V_T3}, v{V_INORM}, vcc")
e("L_notright:")
e(f"    v_lshlrev_b32 v{V_WOFF}, 4, v{V_LANE}")
e(f"    s_mul_i32 s{S_WOFF}, s{S_WAVE}, 4608")
imask = 0
for l in range(56):
    if l % 14 < 12:
        imask |= 1 << l
e(f"    s_mov_b32 s40, 0x{imask & 0xffffffff:08x}")
e(f"    s_mov_b32 s41, 0x{imask >> 32:08x}")
e("    s_waitcnt lgkmcnt(0)")
for (r, lo, n) in ((S_X, 4, XBYTES), (S_Wt, 6, WBYTES), (S_O, 34, XBYTES)):
    e(f"    s_mov_b32 s{r}, s{lo}")
    e(f"    s_mov_b32 s{r+1}, s{lo+1}")
    e(f"    s_mov_b32 s{r+2}, {n}")
    e(f"    s_mov_b32 s{r+3}, 0x00020000")

queue = []
def wait_for(tags):
    last = -1
    for i, t in enumerate(queue):
        if t in tags:
            last = i
    n = len(queue) - 1 - last
    assert n <= 63
    e(f"    s_waitcnt vmcnt({n})")

def emit_wtap(tap):
    slot = tap % NSLOT
    e(f"    s_add_u32 s{S_T2}, s{S_WOFF}, {tap*TAPB}")
    e(f"    s_add_u32 s{S_M0}, s{S_WOFF}, {WB + slot*TAPB}")
    e(f"    s_mov_b32 m0, s{S_M0}")
    e("    s_nop 0")
    for i in range(4):
        off = f" offset:{i*1024}" if i else ""
        e(f"    buffer_load_dwordx4 v{V_WOFF}, s[{S_Wt}:{S_Wt+3}], s{S_T2} offen{off} lds")
    e("    s_mov_b32 exec_hi, 0")
    e(f"    s_add_u32 s{S_M0}, s{S_M0}, 4096")
    e(f"    s_add_u32 s{S_T2}, s{S_T2}, 4096")
    e(f"    s_mov_b32 m0, s{S_M0}")
    e("    s_nop 0")
    e(f"    buffer_load_dwordx4 v{V_WOFF}, s[{S_Wt}:{S_Wt+3}], s{S_T2} offen lds")
    e("    s_mov_b32 exec_hi, -1")
    queue.extend([("W", tap)] * 5)

def emit_row_setup(it):
    e(f"    s_add_u32 s{S_T0}, s{S_WAVE}, {4*it}")
    e(f"    s_add_u32 s{S_T1}, s{S_T0}, s{S_Y0}")
    e(f"    s_sub_u32 s{S_T1}, s{S_T1}, 2")
    e(f"    s_mul_i32 s{S_T2}, s{S_T1}, 224")
    e(f"    s_add_u32 s{S_T2}, s{S_T2}, s{S_X0}")
    e(f"    s_sub_u32 s{S_T2}, s{S_T2}, 2")
    e(f"    s_mul_i32 s{S_ROWOFF}, s{S_T2}, 192")
    e(f"    s_cmp_lt_u32 s{S_T1}, 224")
    e(f"    s_cselect_b32 s{S_ROWOFF}, s{S_ROWOFF}, s{S_BIG}")
    if it == 4:
        e(f"    s_cmp_lt_u32 s{S_T0}, 18")
        e(f"    s_cselect_b32 s{S_ROWOFF}, s{S_ROWOFF}, s{S_BIG}")
    e(f"    s_mul_i32 s{S_RM0}, s{S_T0}, {ROWB}")

def emit_row_instr(it, j):
    e("    s_mov_b64 exec, s[40:41]")
    if j == 0:
        e(f"    s_add_u32 s{S_T2}, s{S_ROWOFF}, s{S_ADJ}")
        e(f"    s_mov_b32 m0, s{S_RM0}")
        v = V_ILEFT
    else:
        e(f"    s_add_u32 s{S_T2}, s{S_ROWOFF}, {j*4*192}")
        e(f"    s_add_u32 s{S_M0}, s{S_RM0}, {j*4*PSTR}")
        e(f"    s_mov_b32 m0, s{S_M0}")
        v = V_IRIGHT if j == 4 else V_INORM
    e("    s_nop 0")
    e(f"    buffer_load_dwordx4 v{v}, s[{S_X}:{S_X+3}], s{S_T2} offen lds")
    e("    s_mov_b64 exec, -1")
    queue.append(("R", it))

NIT1 = (2 * R0 + 3) // 4 + 1
emit_wtap(0)
for it in range(NIT1):
    emit_row_setup(it)
    for j in range(5):
        emit_row_instr(it, j)
emit_wtap(1)
emit_wtap(2)

e(f"    v_and_b32 v{V_T0}, 15, v{V_LANE}")
e(f"    v_lshrrev_b32 v{V_T1}, 4, v{V_LANE}")
e(f"    s_and_b32 s{S_T0}, s{S_WAVE}, 1")
e(f"    s_mul_i32 s{S_T0}, s{S_T0}, {ROWB}")
e(f"    v_mul_u32_u24 v{V_A0}, {PSTR}, v{V_T0}")
e(f"    v_lshl_add_u32 v{V_A0}, v{V_T1}, 4, v{V_A0}")
e(f"    v_add_u32 v{V_A0}, s{S_T0}, v{V_A0}")
e(f"    v_add_u32 v{V_A1}, {8*ROWB}, v{V_A0}")
e(f"    v_lshrrev_b32 v{V_T2}, 2, v{V_T0}")
e(f"    v_and_b32 v{V_T3}, 3, v{V_T0}")
e(f"    v_lshl_add_u32 v{V_T2}, v{V_T1}, 3, v{V_T2}")
e(f"    v_mul_u32_u24 v{V_T2}, 192, v{V_T2}")
e(f"    s_lshr_b32 s{S_T1}, s{S_WAVE}, 1")
e(f"    s_mul_i32 s{S_T1}, s{S_T1}, 96")
e(f"    s_add_u32 s{S_T1}, s{S_T1}, {WB}")
e(f"    v_add_u32 v{V_T2}, s{S_T1}, v{V_T2}")
e(f"    v_lshl_add_u32 v{V_B01lo}, v{V_T3}, 4, v{V_T2}")
e(f"    v_lshl_add_u32 v{V_B2lo}, v{V_T3}, 3, v{V_T2}")
e(f"    v_add_u32 v{V_B2lo}, 64, v{V_B2lo}")
e(f"    v_add_u32 v{V_B01hi}, {2*TAPB}, v{V_B01lo}")
e(f"    v_add_u32 v{V_B2hi}, {2*TAPB}, v{V_B2lo}")
e(f"    v_mul_u32_u24 v{V_O1}, 192, v{V_T0}")
e(f"    s_lshr_b32 s{S_T1}, s{S_WAVE}, 1")
e(f"    s_mul_i32 s{S_T1}, s{S_T1}, 96")
e(f"    v_add_u32 v{V_O1}, s{S_T1}, v{V_O1}")
e(f"    v_lshl_add_u32 v{V_O2}, v{V_T1}, 3, v{V_O1}")
e(f"    v_add_u32 v{V_O2}, 64, v{V_O2}")
e(f"    v_lshl_add_u32 v{V_O1}, v{V_T1}, 4, v{V_O1}")
e(f"    s_and_b32 s{S_T0}, s{S_WAVE}, 1")
e(f"    s_add_u32 s{S_T0}, s{S_T0}, s{S_Y0}")
e(f"    s_mul_i32 s{S_T0}, s{S_T0}, 224")
e(f"    s_add_u32 s{S_T0}, s{S_T0}, s{S_X0}")
e(f"    s_mul_i32 s{S_OBASE}, s{S_T0}, 192")

def w_reads(step):
    tap, ks = divmod(step, 3)
    slot = tap % NSLOT
    r = []
    for t in range(3):
        for half in range(2):
            off = (slot % 2) * TAPB + ks * 32 * 192 + half * 4 * 192 + (8 if t == 1 else 0)
            if slot < 2:
                base = V_B2lo if t == 2 else V_B01lo
            else:
                base = V_B2hi if t == 2 else V_B01hi
            p, d = wreg(step, t)
            d += half * 2
            r.append(f"    ds_read_b64_tr_b16 {p}[{d}:{d+1}], v{base} offset:{off}")
    return r

def p_reads(step, rows, buf):
    tap, ks = divmod(step, 3)
    ky, kx = divmod(tap, 3)
    r = []
    for n, j in enumerate(rows):
        if j < 4:
            base, jj = V_A0, j
        else:
            base, jj = V_A1, j - 4
        off = ((2 * jj + 2 * ky) * HC + 2 * kx) * PSTR + ks * 64
        d = PA + buf * 16 + n * 4
        r.append(f"    ds_read_b128 v[{d}:{d+3}], v{base} offset:{off}")
    return r

def store_row(j, acc0, k):
    st = V_ST + (k % 2) * 6
    r = []
    for q in range(6):
        r.append(f"    v_cvt_pk_bf16_f32 v{st+q}, v{acc0+2*q}, v{acc0+2*q+1}")
    r.append(f"    s_add_u32 s{S_T3}, s{S_OBASE}, {2*j*224*192}")
    r.append(f"    buffer_store_dwordx4 v[{st}:{st+3}], v{V_O1}, s[{S_O}:{S_O+3}], s{S_T3} offen")
    r.append(f"    buffer_store_dwordx2 v[{st+4}:{st+5}], v{V_O2}, s[{S_O}:{S_O+3}], s{S_T3} offen")
    return r

if DEBUG:
    e("    s_memtime s[72:73]")
need = {("W", 0)} | {("R", it) for it in range(NIT1)}
wait_for(need)
e("    s_barrier")
if DEBUG:
    e("    s_memtime s[74:75]")

rows1 = list(range(R0))
for r in w_reads(0) + p_reads(0, rows1, 0):
    e(r)
late = []
for it in range(NIT1, 5):
    late.append(("setup", it))
    for j in range(5):
        late.append(("instr", it, j))
NSTEP = 27
g_rows = []
j0 = R0
for g in PH2:
    g_rows.append(list(range(j0, j0 + g)))
    j0 += g
for s in range(NSTEP):
    tap, ks = divmod(s, 3)
    buf = s % 2
    if ks == 2 and tap < 8:
        need = {("W", tap + 1)}
        if tap == 7:
            need |= {("R", it) for it in range(5)}
        wait_for(need)
        e("    s_barrier")
        if tap + 3 <= 8:
            emit_wtap(tap + 3)
    e("    s_waitcnt lgkmcnt(0)")
    if s + 1 < NSTEP:
        nxt = w_reads(s + 1) + p_reads(s + 1, rows1, 1 - buf)
    else:
        nxt = p_reads(0, g_rows[0], 1 - buf)
    m = 0
    nm = R0 * 3
    for i in range(R0):
        for t in range(3):
            acc = ACC1 + (i * 3 + t) * 4
            p, a = wreg(s, t)
            b = PA + buf * 16 + i * 4
            c = "0" if s == 0 else f"v[{acc}:{acc+3}]"
            e(f"    v_mfma_f32_16x16x32_bf16 v[{acc}:{acc+3}], {p}[{a}:{a+3}], v[{b}:{b+3}], {c}")
            if m < len(nxt):
                e(nxt[m])
            if m == nm - 1:
                for r in nxt[nm:]:
                    e(r)
            if m in (3, 8) and late and s >= 0:
                it = late.pop(0)
                if it[0] == "setup":
                    emit_row_setup(it[1])
                    it = late.pop(0)
                emit_row_instr(it[1], it[2])
            m += 1
assert not late
if DEBUG:
    e("    s_memtime s[76:77]")

pending_stores = []
for i in range(R0):
    pending_stores.append((i, ACC1 + i * 12))
bufbase = 27 % 2
gsteps = 0
acc_cur = ACC2
nst = 0
for gi, rows in enumerate(g_rows):
    G = len(rows)
    if gi == 0:
        accb = ACC2
    else:
        accb = ACC2 + sum(PH2[:gi]) * 12
    st_list = []
    for (j, a0) in pending_stores:
        st_list.append(store_row(j, a0, nst)); nst += 1
    pending_stores = []
    for s in range(NSTEP):
        buf = (bufbase + gsteps) % 2
        gsteps += 1
        e("    s_waitcnt lgkmcnt(0)")
        if s + 1 < NSTEP:
            nxt = p_reads(s + 1, rows, 1 - buf)
        elif gi + 1 < len(g_rows):
            nxt = p_reads(0, g_rows[gi + 1], 1 - buf)
        else:
            nxt = []
        m = 0
        for i in range(G):
            for t in range(3):
                acc = accb + (i * 3 + t) * 4
                p, a = wreg(s, t)
                b = PA + buf * 16 + i * 4
                c = "0" if s == 0 else f"v[{acc}:{acc+3}]"
                e(f"    v_mfma_f32_16x16x32_bf16 v[{acc}:{acc+3}], {p}[{a}:{a+3}], v[{b}:{b+3}], {c}")
                if m < len(nxt):
                    e(nxt[m])
                m += 1
        if s >= 2 and s % 2 == 0 and st_list:
            for r in st_list.pop(0):
                e(r)
    assert not st_list
    for n, j in enumerate(rows):
        pending_stores.append((j, accb + n * 12))
if DEBUG:
    e("    s_memtime s[86:87]")
e("    s_nop 7")
e("    s_nop 7")
for (j, a0) in pending_stores:
    for r in store_row(j, a0, nst):
        e(r)
    nst += 1
if DEBUG:
    e("    s_waitcnt vmcnt(0)")
    e("    s_memtime s[78:79]")
    e("    s_waitcnt lgkmcnt(0)")
    e("    s_mov_b32 s80, s68")
    e("    s_mov_b32 s81, s69")
    e("    s_mov_b32 s82, 256")
    e("    s_mov_b32 s83, 0x00020000")
    regs = [72, 74, 76, 86, 78]
    for q, r in enumerate(regs):
        e(f"    s_sub_u32 s{r}, s{r}, s70")
        e(f"    v_mov_b32 v{20+q}, s{r}")
    e("    v_mov_b32 v30, 0")
    e("    s_mov_b64 exec, 1")
    for q in range(5):
        e(f"    buffer_atomic_umax v{20+q}, v30, s[80:83], 0 offen offset:{4*q}")
    for q in range(5):
        e(f"    v_not_b32 v{20+q}, v{20+q}")
    for q in range(5):
        e(f"    buffer_atomic_umax v{20+q}, v30, s[80:83], 0 offen offset:{32+4*q}")
e("L_done:")
e("    s_endpgm")
e('.section .rodata,"a"')
e(".p2align 6")
e(".amdhsa_kernel standalone__dilated_atrous__vision_kernel")
e("  .amdhsa_next_free_vgpr 512")
e("  .amdhsa_next_free_sgpr 96")
e("  .amdhsa_accum_offset 256")
e("  .amdhsa_group_segment_fixed_size 0")
e("  .amdhsa_kernarg_size 40")
e("  .amdhsa_user_sgpr_count 2")
e("  .amdhsa_user_sgpr_kernarg_segment_ptr 1")
e("  .amdhsa_system_sgpr_workgroup_id_x 1")
e(".end_amdhsa_kernel")

path = sys.argv[1] if len(sys.argv) > 1 else "standalone__dilated_atrous__vision.s"
open(path, "w").write("\n".join(out) + "\n")
print("wrote", path, len(out), "lines")
```

```python
import sys, os

H = W = 224
C = 96
TH, TW = 14, 16
HC = TW + 4
HRA = 20
PSTR = 224
ROWB = HC * PSTR
WB = HRA * ROWB
TAPB = 18432
NSLOT = 4
LDS_TOTAL = WB + NSLOT * TAPB
XBYTES = H * W * C * 2
WBYTES = 9 * TAPB
BIG = 0x40000000

DEBUG = len(sys.argv) > 2

out = []
def e(s=""):
    out.append(s)

HEADER = open("standalone__dilated_atrous__vision.s.ref").read().split("; Override launch")[0]
e(HEADER.rstrip())
e(f"; @launch grid=(224,1,1) block=(256,1,1) lds={LDS_TOTAL}")
e('.amdgcn_target "amdgcn-amd-amdhsa--gfx950"')
e(".text")
e(".globl standalone__dilated_atrous__vision_kernel")
e(".p2align 8")
e(".type standalone__dilated_atrous__vision_kernel,@function")
e("standalone__dilated_atrous__vision_kernel:")

S_X, S_Wt, S_O = 8, 12, 16
S_WAVE = 20
S_Y0, S_X0, S_TX = 21, 22, 23
S_T0, S_T1, S_T2, S_T3 = 24, 25, 26, 27
S_M0 = 28
S_ROWOFF = 29
S_WOFF = 30
S_OBASE = 31
S_BIG = 32
S_ADJ = 33
S_RM0 = 36
V_LANE = 1
V_INORM, V_ILEFT, V_IRIGHT = 2, 3, 4
V_WOFF = 5
V_A0, V_A1 = 6, 7
V_B01lo, V_B2lo, V_B01hi, V_B2hi = 8, 9, 10, 11
V_O1, V_O2 = 12, 13
V_T0, V_T1, V_T2, V_T3 = 14, 15, 16, 17
V_ST = 20
ACC = 32
PA = 116
WV = 184

def wreg(step, t):
    if step < 21:
        return "a", step * 12 + t * 4
    return "v", WV + (step - 21) * 12 + t * 4

e("    s_cmp_ge_u32 s2, 224")
e("    s_cbranch_scc1 L_done")
if DEBUG:
    e("    s_memtime s[70:71]")
    e("    s_load_dwordx2 s[68:69], s[0:1], 24")
e("    s_load_dwordx4 s[4:7], s[0:1], 0")
e("    s_load_dwordx2 s[34:35], s[0:1], 16")
e(f"    v_and_b32 v{V_LANE}, 63, v0")
e(f"    v_lshrrev_b32 v{V_T0}, 6, v0")
e("    s_nop 0")
e(f"    v_readfirstlane_b32 s{S_WAVE}, v{V_T0}")
e(f"    s_and_b32 s{S_T3}, s2, 7")
e(f"    s_lshr_b32 s{S_T2}, s2, 3")
e(f"    s_cmp_ge_u32 s{S_T2}, 14")
e(f"    s_cselect_b32 s{S_T1}, 1, 0")
e(f"    s_cselect_b32 s{S_T0}, 14, 0")
e(f"    s_sub_u32 s{S_TX}, s{S_T2}, s{S_T0}")
e(f"    s_lshl_b32 s{S_T3}, s{S_T3}, 1")
e(f"    s_add_u32 s{S_T1}, s{S_T1}, s{S_T3}")
e(f"    s_mul_i32 s{S_Y0}, s{S_T1}, {TH}")
e(f"    s_lshl_b32 s{S_X0}, s{S_TX}, 4")
e(f"    s_mov_b32 s{S_BIG}, {BIG}")
e(f"    s_cmp_eq_u32 s{S_TX}, 0")
e(f"    s_cselect_b32 s{S_ADJ}, 384, 0")
e(f"    v_mul_u32_u24 v{V_T0}, 4682, v{V_LANE}")
e(f"    v_lshrrev_b32 v{V_T0}, 16, v{V_T0}")
e(f"    v_mul_u32_u24 v{V_T1}, 14, v{V_T0}")
e(f"    v_sub_u32 v{V_T1}, v{V_LANE}, v{V_T1}")
e(f"    v_mul_u32_u24 v{V_T2}, 192, v{V_T0}")
e(f"    v_lshl_add_u32 v{V_INORM}, v{V_T1}, 4, v{V_T2}")
e(f"    v_mov_b32 v{V_T3}, {BIG}")
e(f"    v_mov_b32 v{V_ILEFT}, v{V_INORM}")
e(f"    v_mov_b32 v{V_IRIGHT}, v{V_INORM}")
e(f"    s_cmp_eq_u32 s{S_TX}, 0")
e("    s_cbranch_scc0 L_notleft")
e(f"    v_subrev_u32 v{V_T2}, 384, v{V_INORM}")
e(f"    v_cmp_lt_u32 vcc, 1, v{V_T0}")
e("    s_nop 1")
e(f"    v_cndmask_b32 v{V_ILEFT}, v{V_T3}, v{V_T2}, vcc")
e("L_notleft:")
e(f"    s_cmp_eq_u32 s{S_TX}, 13")
e("    s_cbranch_scc0 L_notright")
e(f"    v_cmp_gt_u32 vcc, 2, v{V_T0}")
e("    s_nop 1")
e(f"    v_cndmask_b32 v{V_IRIGHT}, v{V_T3}, v{V_INORM}, vcc")
e("L_notright:")
e(f"    v_lshlrev_b32 v{V_WOFF}, 4, v{V_LANE}")
e(f"    s_mul_i32 s{S_WOFF}, s{S_WAVE}, 4608")
imask = 0
for l in range(56):
    if l % 14 < 12:
        imask |= 1 << l
e(f"    s_mov_b32 s40, 0x{imask & 0xffffffff:08x}")
e(f"    s_mov_b32 s41, 0x{imask >> 32:08x}")
e("    s_waitcnt lgkmcnt(0)")
for (r, lo, n) in ((S_X, 4, XBYTES), (S_Wt, 6, WBYTES), (S_O, 34, XBYTES)):
    e(f"    s_mov_b32 s{r}, s{lo}")
    e(f"    s_mov_b32 s{r+1}, s{lo+1}")
    e(f"    s_mov_b32 s{r+2}, {n}")
    e(f"    s_mov_b32 s{r+3}, 0x00020000")

queue = []
def wait_for(tags):
    last = -1
    for i, t in enumerate(queue):
        if t in tags:
            last = i
    n = len(queue) - 1 - last
    assert n <= 63
    e(f"    s_waitcnt vmcnt({n})")

def emit_wtap(tap):
    slot = tap % NSLOT
    e(f"    s_add_u32 s{S_T2}, s{S_WOFF}, {tap*TAPB}")
    e(f"    s_add_u32 s{S_M0}, s{S_WOFF}, {WB + slot*TAPB}")
    e(f"    s_mov_b32 m0, s{S_M0}")
    e("    s_nop 0")
    for i in range(4):
        off = f" offset:{i*1024}" if i else ""
        e(f"    buffer_load_dwordx4 v{V_WOFF}, s[{S_Wt}:{S_Wt+3}], s{S_T2} offen{off} lds")
    e("    s_mov_b32 exec_hi, 0")
    e(f"    s_add_u32 s{S_M0}, s{S_M0}, 4096")
    e(f"    s_add_u32 s{S_T2}, s{S_T2}, 4096")
    e(f"    s_mov_b32 m0, s{S_M0}")
    e("    s_nop 0")
    e(f"    buffer_load_dwordx4 v{V_WOFF}, s[{S_Wt}:{S_Wt+3}], s{S_T2} offen lds")
    e("    s_mov_b32 exec_hi, -1")
    queue.extend([("W", tap)] * 5)

def emit_row_setup(it):
    e(f"    s_add_u32 s{S_T0}, s{S_WAVE}, {4*it}")
    e(f"    s_add_u32 s{S_T1}, s{S_T0}, s{S_Y0}")
    e(f"    s_sub_u32 s{S_T1}, s{S_T1}, 2")
    e(f"    s_mul_i32 s{S_T2}, s{S_T1}, 224")
    e(f"    s_add_u32 s{S_T2}, s{S_T2}, s{S_X0}")
    e(f"    s_sub_u32 s{S_T2}, s{S_T2}, 2")
    e(f"    s_mul_i32 s{S_ROWOFF}, s{S_T2}, 192")
    e(f"    s_cmp_lt_u32 s{S_T1}, 224")
    e(f"    s_cselect_b32 s{S_ROWOFF}, s{S_ROWOFF}, s{S_BIG}")
    if it == 4:
        e(f"    s_cmp_lt_u32 s{S_T0}, 18")
        e(f"    s_cselect_b32 s{S_ROWOFF}, s{S_ROWOFF}, s{S_BIG}")
    e(f"    s_mul_i32 s{S_RM0}, s{S_T0}, {ROWB}")

def emit_row_instr(it, j):
    e("    s_mov_b64 exec, s[40:41]")
    if j == 0:
        e(f"    s_add_u32 s{S_T2}, s{S_ROWOFF}, s{S_ADJ}")
        e(f"    s_mov_b32 m0, s{S_RM0}")
        v = V_ILEFT
    else:
        e(f"    s_add_u32 s{S_T2}, s{S_ROWOFF}, {j*4*192}")
        e(f"    s_add_u32 s{S_M0}, s{S_RM0}, {j*4*PSTR}")
        e(f"    s_mov_b32 m0, s{S_M0}")
        v = V_IRIGHT if j == 4 else V_INORM
    e("    s_nop 0")
    e(f"    buffer_load_dwordx4 v{v}, s[{S_X}:{S_X+3}], s{S_T2} offen lds")
    e("    s_mov_b64 exec, -1")
    queue.append(("R", it))


SCHED = os.environ.get("SCHED", "A")
if SCHED == "A":
    units = [(0,[0,1]), (1,[0,1]), (0,[2,3]), (1,[2,3]), (2,[0,1,2,3]),
             (0,[4,5]), (1,[4,5]), (2,[4,5]), (3,[0,1,2,3,4]),
             (0,[6]), (1,[6]), (2,[6]), (3,[5,6]), (4,list(range(7))),
             (5,list(range(7))), (6,list(range(7)))]
    for j in range(7):
        units += [(7,[j]), (8,[j])]
elif SCHED == "B":
    units = [(t, list(range(7))) for t in range(7)]
    for j in range(7):
        units += [(7,[j]), (8,[j])]
cov = {}
for t, rows in units:
    for j in rows:
        assert (t, j) not in cov
        cov[(t, j)] = 1
assert len(cov) == 63
steps = []
for t, rows in units:
    for ks in range(3):
        steps.append((t, ks, rows))
NS = len(steps)
def row_group(t, j):
    ky = t // 3
    return (2 * j + 1 + 2 * ky) // 4
last_use_row = {}
for i, (t, ks, rows) in enumerate(steps):
    for j in rows:
        last_use_row[j] = i

emit_wtap(0)
emit_row_setup(0)
for j in range(5):
    emit_row_instr(0, j)
pend = [("W", 1), ("R", 1), ("W", 2), ("R", 2), ("W", 3), ("R", 3), ("R", 4)]
pend_flat = []
for k, a in pend:
    if k == "W":
        pend_flat.append(("W", a))
    else:
        pend_flat.append(("Rs", a))
        for j in range(5):
            pend_flat.append(("Ri", a, j))
NPRE = int(os.environ.get("NPRE", "7"))
def issue_item(it):
    if it[0] == "W":
        emit_wtap(it[1])
    elif it[0] == "Rs":
        emit_row_setup(it[1])
    else:
        emit_row_instr(it[1], it[2])
for _ in range(NPRE):
    issue_item(pend_flat.pop(0))
e(f"    v_and_b32 v{V_T0}, 15, v{V_LANE}")
e(f"    v_lshrrev_b32 v{V_T1}, 4, v{V_LANE}")
e(f"    s_and_b32 s{S_T0}, s{S_WAVE}, 1")
e(f"    s_mul_i32 s{S_T0}, s{S_T0}, {ROWB}")
e(f"    v_mul_u32_u24 v{V_A0}, {PSTR}, v{V_T0}")
e(f"    v_lshl_add_u32 v{V_A0}, v{V_T1}, 4, v{V_A0}")
e(f"    v_add_u32 v{V_A0}, s{S_T0}, v{V_A0}")
e(f"    v_add_u32 v{V_A1}, {8*ROWB}, v{V_A0}")
e(f"    v_lshrrev_b32 v{V_T2}, 2, v{V_T0}")
e(f"    v_and_b32 v{V_T3}, 3, v{V_T0}")
e(f"    v_lshl_add_u32 v{V_T2}, v{V_T1}, 3, v{V_T2}")
e(f"    v_mul_u32_u24 v{V_T2}, 192, v{V_T2}")
e(f"    s_lshr_b32 s{S_T1}, s{S_WAVE}, 1")
e(f"    s_mul_i32 s{S_T1}, s{S_T1}, 96")
e(f"    s_add_u32 s{S_T1}, s{S_T1}, {WB}")
e(f"    v_add_u32 v{V_T2}, s{S_T1}, v{V_T2}")
e(f"    v_lshl_add_u32 v{V_B01lo}, v{V_T3}, 4, v{V_T2}")
e(f"    v_lshl_add_u32 v{V_B2lo}, v{V_T3}, 3, v{V_T2}")
e(f"    v_add_u32 v{V_B2lo}, 64, v{V_B2lo}")
e(f"    v_add_u32 v{V_B01hi}, {2*TAPB}, v{V_B01lo}")
e(f"    v_add_u32 v{V_B2hi}, {2*TAPB}, v{V_B2lo}")
e(f"    v_mul_u32_u24 v{V_O1}, 192, v{V_T0}")
e(f"    s_lshr_b32 s{S_T1}, s{S_WAVE}, 1")
e(f"    s_mul_i32 s{S_T1}, s{S_T1}, 96")
e(f"    v_add_u32 v{V_O1}, s{S_T1}, v{V_O1}")
e(f"    v_lshl_add_u32 v{V_O2}, v{V_T1}, 3, v{V_O1}")
e(f"    v_add_u32 v{V_O2}, 64, v{V_O2}")
e(f"    v_lshl_add_u32 v{V_O1}, v{V_T1}, 4, v{V_O1}")
e(f"    s_and_b32 s{S_T0}, s{S_WAVE}, 1")
e(f"    s_add_u32 s{S_T0}, s{S_T0}, s{S_Y0}")
e(f"    s_mul_i32 s{S_T0}, s{S_T0}, 224")
e(f"    s_add_u32 s{S_T0}, s{S_T0}, s{S_X0}")
e(f"    s_mul_i32 s{S_OBASE}, s{S_T0}, 192")

def w_reads(step):
    tap, ks = divmod(step, 3)
    slot = tap % NSLOT
    r = []
    for t in range(3):
        for half in range(2):
            off = (slot % 2) * TAPB + ks * 32 * 192 + half * 4 * 192 + (8 if t == 1 else 0)
            if slot < 2:
                base = V_B2lo if t == 2 else V_B01lo
            else:
                base = V_B2hi if t == 2 else V_B01hi
            p, d = wreg(step, t)
            d += half * 2
            r.append(f"    ds_read_b64_tr_b16 {p}[{d}:{d+1}], v{base} offset:{off}")
    return r

def p_reads(step, rows, buf):
    tap, ks = divmod(step, 3)
    ky, kx = divmod(tap, 3)
    r = []
    for n, j in enumerate(rows):
        if j < 4:
            base, jj = V_A0, j
        else:
            base, jj = V_A1, j - 4
        off = ((2 * jj + 2 * ky) * HC + 2 * kx) * PSTR + ks * 64
        d = PA + buf * 28 + n * 4
        r.append(f"    ds_read_b128 v[{d}:{d+3}], v{base} offset:{off}")
    return r

def store_row(j, acc0, k):
    st = V_ST + (k % 2) * 6
    r = []
    for q in range(6):
        r.append(f"    v_cvt_pk_bf16_f32 v{st+q}, v{acc0+2*q}, v{acc0+2*q+1}")
    r.append(f"    s_add_u32 s{S_T3}, s{S_OBASE}, {2*j*224*192}")
    r.append(f"    buffer_store_dwordx4 v[{st}:{st+3}], v{V_O1}, s[{S_O}:{S_O+3}], s{S_T3} offen")
    r.append(f"    buffer_store_dwordx2 v[{st+4}:{st+5}], v{V_O2}, s[{S_O}:{S_O+3}], s{S_T3} offen")
    return r


satisfied = set()
w_in_regs = {}
next_wtap = 4
def needs(i):
    t, ks, rows = steps[i]
    n = set()
    if (t, ks) not in w_in_regs:
        n.add(("W", t))
    for j in rows:
        n.add(("R", row_group(t, j)))
    return n

def ensure(i, cur):
    global next_wtap
    n = needs(i) - satisfied
    if not n:
        return
    if ("W", 6) in n:
        n |= {("R", k) for k in range(5)} - satisfied
    def pending_has(tg):
        for it in pend_flat:
            if tg[0] == "W" and it == ("W", tg[1]):
                return True
            if tg[0] == "R" and it[0] in ("Rs", "Ri") and it[1] == tg[1]:
                return True
        return False
    for tg in n:
        while pending_has(tg):
            issue_item(pend_flat.pop(0))
        assert tg in queue, tg
    wait_for(n)
    e("    s_barrier")
    satisfied.update(n)
    while next_wtap <= 8:
        old = next_wtap - NSLOT
        if all((old, k) in w_in_regs and w_in_regs[(old, k)] <= cur - 2 for k in range(3)):
            emit_wtap(next_wtap)
            next_wtap += 1
        else:
            break

def reads(i, buf, cur):
    t, ks, rows = steps[i]
    r = []
    if (t, ks) not in w_in_regs:
        r += w_reads(t * 3 + ks)
        w_in_regs[(t, ks)] = cur
    r += p_reads(t * 3 + ks, rows, buf)
    return r

if DEBUG:
    e("    s_memtime s[72:73]")
ensure(0, -1)
if DEBUG:
    e("    s_memtime s[74:75]")
for r in reads(0, 0, -1):
    e(r)
started = set()
store_q = []
nst = 0
for i in range(NS):
    t, ks, rows = steps[i]
    buf = i % 2
    if i + 1 < NS:
        ensure(i + 1, i)
    e("    s_waitcnt lgkmcnt(0)")
    nxt = reads(i + 1, 1 - buf, i) if i + 1 < NS else []
    nm = 3 * len(rows)
    m = 0
    extra = []
    if store_q and store_q[0][0] <= i:
        _, j = store_q.pop(0)
        extra = store_row(j, ACC + j * 12, nst); nst += 1
    for n, j in enumerate(rows):
        for tt in range(3):
            acc = ACC + (j * 3 + tt) * 4
            p, a = wreg(t * 3 + ks, tt)
            b = PA + buf * 28 + n * 4
            c = f"v[{acc}:{acc+3}]" if (j, tt) in started else "0"
            started.add((j, tt))
            e(f"    v_mfma_f32_16x16x32_bf16 v[{acc}:{acc+3}], {p}[{a}:{a+3}], v[{b}:{b+3}], {c}")
            if m < len(nxt):
                e(nxt[m])
            if m == nm - 1:
                for r in nxt[nm:]:
                    e(r)
            if m == 1 and pend_flat:
                it = pend_flat.pop(0)
                issue_item(it)
                if it[0] == "Rs":
                    issue_item(pend_flat.pop(0))
            m += 1
    for r in extra:
        e(r)
        if "buffer_store" in r:
            queue.append(("S", 0))
    for j in rows:
        if last_use_row[j] == i:
            store_q.append((i + 2, j))
assert not pend_flat and next_wtap == 9
if DEBUG:
    e("    s_memtime s[76:77]")
    e("    s_memtime s[86:87]")
e("    s_nop 7")
e("    s_nop 7")
for _, j in store_q:
    for r in store_row(j, ACC + j * 12, nst):
        e(r)
    nst += 1
if DEBUG:
    e("    s_waitcnt vmcnt(0)")
    e("    s_memtime s[78:79]")
    e("    s_waitcnt lgkmcnt(0)")
    e("    s_mov_b32 s80, s68")
    e("    s_mov_b32 s81, s69")
    e("    s_mov_b32 s82, 256")
    e("    s_mov_b32 s83, 0x00020000")
    regs = [72, 74, 76, 86, 78]
    for q, r in enumerate(regs):
        e(f"    s_sub_u32 s{r}, s{r}, s70")
        e(f"    v_mov_b32 v{20+q}, s{r}")
    e("    v_mov_b32 v30, 0")
    e("    s_mov_b64 exec, 1")
    for q in range(5):
        e(f"    buffer_atomic_umax v{20+q}, v30, s[80:83], 0 offen offset:{4*q}")
    for q in range(5):
        e(f"    v_not_b32 v{20+q}, v{20+q}")
    for q in range(5):
        e(f"    buffer_atomic_umax v{20+q}, v30, s[80:83], 0 offen offset:{32+4*q}")
e("L_done:")
e("    s_endpgm")
e('.section .rodata,"a"')
e(".p2align 6")
e(".amdhsa_kernel standalone__dilated_atrous__vision_kernel")
e("  .amdhsa_next_free_vgpr 512")
e("  .amdhsa_next_free_sgpr 96")
e("  .amdhsa_accum_offset 256")
e("  .amdhsa_group_segment_fixed_size 0")
e("  .amdhsa_kernarg_size 40")
e("  .amdhsa_user_sgpr_count 2")
e("  .amdhsa_user_sgpr_kernarg_segment_ptr 1")
e("  .amdhsa_system_sgpr_workgroup_id_x 1")
e(".end_amdhsa_kernel")

path = sys.argv[1] if len(sys.argv) > 1 else "standalone__dilated_atrous__vision.s"
open(path, "w").write("\n".join(out) + "\n")
print("wrote", path, len(out), "lines")
```

```python
import sys, os

H = W = 224
C = 96
TH, TW = 14, 16
HC = TW + 4
HRA = 20
PSTR = 224
ROWB = HC * PSTR
WB = HRA * ROWB
TAPB = 18432
NSLOT = 4
LDS_TOTAL = WB + NSLOT * TAPB
XBYTES = H * W * C * 2
WBYTES = 9 * TAPB
BIG = 0x40000000

DEBUG = len(sys.argv) > 2

out = []
def e(s=""):
    out.append(s)

HEADER = open("standalone__dilated_atrous__vision.s.ref").read().split("; Override launch")[0]
e(HEADER.rstrip())
e(f"; @launch grid=(224,1,1) block=(256,1,1) lds={LDS_TOTAL}")
e('.amdgcn_target "amdgcn-amd-amdhsa--gfx950"')
e(".text")
e(".globl standalone__dilated_atrous__vision_kernel")
e(".p2align 8")
e(".type standalone__dilated_atrous__vision_kernel,@function")
e("standalone__dilated_atrous__vision_kernel:")

S_X, S_Wt, S_O = 8, 12, 16
S_WAVE = 20
S_Y0, S_X0, S_TX = 21, 22, 23
S_T0, S_T1, S_T2, S_T3 = 24, 25, 26, 27
S_M0 = 28
S_ROWOFF = 29
S_WOFF = 30
S_OBASE = 31
S_BIG = 32
S_ADJ = 33
S_RM0 = 36
S_WK = 44
ROT = int(os.environ.get("ROT", "1"))
V_LANE = 1
V_INORM, V_ILEFT, V_IRIGHT = 2, 3, 4
V_WOFF = 5
V_A0, V_A1 = 6, 7
V_B01lo, V_B2lo, V_B01hi, V_B2hi = 8, 9, 10, 11
V_O1, V_O2 = 12, 13
V_T0, V_T1, V_T2, V_T3 = 14, 15, 16, 17
V_ST = 20
ACC = 32
PA = 116
WV = 184

def wreg(step, t):
    if step < 21:
        return "a", step * 12 + t * 4
    return "v", WV + (step - 21) * 12 + t * 4

e("    s_cmp_ge_u32 s2, 224")
e("    s_cbranch_scc1 L_done")
if DEBUG:
    e("    s_memtime s[70:71]")
    e("    s_load_dwordx2 s[68:69], s[0:1], 24")
e("    s_load_dwordx4 s[4:7], s[0:1], 0")
e("    s_load_dwordx2 s[34:35], s[0:1], 16")
e(f"    v_and_b32 v{V_LANE}, 63, v0")
e(f"    v_lshrrev_b32 v{V_T0}, 6, v0")
e("    s_nop 0")
e(f"    v_readfirstlane_b32 s{S_WAVE}, v{V_T0}")
e(f"    s_and_b32 s{S_T3}, s2, 7")
e(f"    s_lshr_b32 s{S_T2}, s2, 3")
e(f"    s_cmp_ge_u32 s{S_T2}, 14")
e(f"    s_cselect_b32 s{S_T1}, 1, 0")
e(f"    s_cselect_b32 s{S_T0}, 14, 0")
e(f"    s_sub_u32 s{S_TX}, s{S_T2}, s{S_T0}")
e(f"    s_lshl_b32 s{S_T3}, s{S_T3}, 1")
e(f"    s_add_u32 s{S_T1}, s{S_T1}, s{S_T3}")
e(f"    s_mul_i32 s{S_Y0}, s{S_T1}, {TH}")
e(f"    s_lshl_b32 s{S_X0}, s{S_TX}, 4")
e(f"    s_mov_b32 s{S_BIG}, {BIG}")
e(f"    s_cmp_eq_u32 s{S_TX}, 0")
e(f"    s_cselect_b32 s{S_ADJ}, 384, 0")
e(f"    v_mul_u32_u24 v{V_T0}, 4682, v{V_LANE}")
e(f"    v_lshrrev_b32 v{V_T0}, 16, v{V_T0}")
e(f"    v_mul_u32_u24 v{V_T1}, 14, v{V_T0}")
e(f"    v_sub_u32 v{V_T1}, v{V_LANE}, v{V_T1}")
e(f"    v_mul_u32_u24 v{V_T2}, 192, v{V_T0}")
e(f"    v_lshl_add_u32 v{V_INORM}, v{V_T1}, 4, v{V_T2}")
e(f"    v_mov_b32 v{V_T3}, {BIG}")
e(f"    v_mov_b32 v{V_ILEFT}, v{V_INORM}")
e(f"    v_mov_b32 v{V_IRIGHT}, v{V_INORM}")
e(f"    s_cmp_eq_u32 s{S_TX}, 0")
e("    s_cbranch_scc0 L_notleft")
e(f"    v_subrev_u32 v{V_T2}, 384, v{V_INORM}")
e(f"    v_cmp_lt_u32 vcc, 1, v{V_T0}")
e("    s_nop 1")
e(f"    v_cndmask_b32 v{V_ILEFT}, v{V_T3}, v{V_T2}, vcc")
e("L_notleft:")
e(f"    s_cmp_eq_u32 s{S_TX}, 13")
e("    s_cbranch_scc0 L_notright")
e(f"    v_cmp_gt_u32 vcc, 2, v{V_T0}")
e("    s_nop 1")
e(f"    v_cndmask_b32 v{V_IRIGHT}, v{V_T3}, v{V_INORM}, vcc")
e("L_notright:")
e(f"    v_lshlrev_b32 v{V_WOFF}, 4, v{V_LANE}")
if ROT:
    e(f"    s_lshr_b32 s{S_T0}, s2, 3")
else:
    e(f"    s_mov_b32 s{S_T0}, 0")
e(f"    s_add_u32 s{S_T1}, s{S_T0}, s{S_WAVE}")
e(f"    s_and_b32 s{S_T1}, s{S_T1}, 3")
e(f"    s_mul_i32 s{S_WOFF}, s{S_T1}, 4608")
e(f"    s_lshr_b32 s{S_T0}, s{S_T0}, 2")
for k in range(4):
    e(f"    s_add_u32 s{S_T1}, s{S_T0}, {k}")
    e(f"    s_and_b32 s{S_T1}, s{S_T1}, 3")
    e(f"    s_lshl_b32 s{S_T1}, s{S_T1}, 10")
    e(f"    s_add_u32 s{S_WK+k}, s{S_T1}, s{S_WOFF}")
e(f"    s_add_u32 s{S_WK+4}, s{S_WOFF}, 4096")
imask = 0
for l in range(56):
    if l % 14 < 12:
        imask |= 1 << l
e(f"    s_mov_b32 s40, 0x{imask & 0xffffffff:08x}")
e(f"    s_mov_b32 s41, 0x{imask >> 32:08x}")
e("    s_waitcnt lgkmcnt(0)")
for (r, lo, n) in ((S_X, 4, XBYTES), (S_Wt, 6, WBYTES), (S_O, 34, XBYTES)):
    e(f"    s_mov_b32 s{r}, s{lo}")
    e(f"    s_mov_b32 s{r+1}, s{lo+1}")
    e(f"    s_mov_b32 s{r+2}, {n}")
    e(f"    s_mov_b32 s{r+3}, 0x00020000")

queue = []
def wait_for(tags):
    last = -1
    for i, t in enumerate(queue):
        if t in tags:
            last = i
    n = len(queue) - 1 - last
    assert n <= 63
    e(f"    s_waitcnt vmcnt({n})")

def emit_wtap(tap):
    slot = tap % NSLOT
    for k in range(5):
        if k == 4:
            e("    s_mov_b32 exec_hi, 0")
        e(f"    s_add_u32 m0, s{S_WK+k}, {WB + slot*TAPB}")
        e(f"    s_add_u32 s{S_T2}, s{S_WK+k}, {tap*TAPB}")
        e(f"    buffer_load_dwordx4 v{V_WOFF}, s[{S_Wt}:{S_Wt+3}], s{S_T2} offen lds")
    e("    s_mov_b32 exec_hi, -1")
    queue.extend([("W", tap)] * 5)

def emit_row_setup(it):
    e(f"    s_add_u32 s{S_T0}, s{S_WAVE}, {4*it}")
    e(f"    s_add_u32 s{S_T1}, s{S_T0}, s{S_Y0}")
    e(f"    s_sub_u32 s{S_T1}, s{S_T1}, 2")
    e(f"    s_mul_i32 s{S_T2}, s{S_T1}, 224")
    e(f"    s_add_u32 s{S_T2}, s{S_T2}, s{S_X0}")
    e(f"    s_sub_u32 s{S_T2}, s{S_T2}, 2")
    e(f"    s_mul_i32 s{S_ROWOFF}, s{S_T2}, 192")
    e(f"    s_cmp_lt_u32 s{S_T1}, 224")
    e(f"    s_cselect_b32 s{S_ROWOFF}, s{S_ROWOFF}, s{S_BIG}")
    if it == 4:
        e(f"    s_cmp_lt_u32 s{S_T0}, 18")
        e(f"    s_cselect_b32 s{S_ROWOFF}, s{S_ROWOFF}, s{S_BIG}")
    e(f"    s_mul_i32 s{S_RM0}, s{S_T0}, {ROWB}")

def emit_row_instr(it, j):
    e("    s_mov_b64 exec, s[40:41]")
    if j == 0:
        e(f"    s_add_u32 s{S_T2}, s{S_ROWOFF}, s{S_ADJ}")
        e(f"    s_mov_b32 m0, s{S_RM0}")
        v = V_ILEFT
    else:
        e(f"    s_add_u32 s{S_T2}, s{S_ROWOFF}, {j*4*192}")
        e(f"    s_add_u32 s{S_M0}, s{S_RM0}, {j*4*PSTR}")
        e(f"    s_mov_b32 m0, s{S_M0}")
        v = V_IRIGHT if j == 4 else V_INORM
    e("    s_nop 0")
    e(f"    buffer_load_dwordx4 v{v}, s[{S_X}:{S_X+3}], s{S_T2} offen lds")
    e("    s_mov_b64 exec, -1")
    queue.append(("R", it))


SCHED = os.environ.get("SCHED", "A")
if SCHED == "A":
    units = [(0,[0,1]), (1,[0,1]), (0,[2,3]), (1,[2,3]), (2,[0,1,2,3]),
             (0,[4,5]), (1,[4,5]), (2,[4,5]), (3,[0,1,2,3,4]),
             (0,[6]), (1,[6]), (2,[6]), (3,[5,6]), (4,list(range(7))),
             (5,list(range(7))), (6,list(range(7)))]
    for j in range(7):
        units += [(7,[j]), (8,[j])]
elif SCHED == "B":
    units = [(t, list(range(7))) for t in range(7)]
    for j in range(7):
        units += [(7,[j]), (8,[j])]
cov = {}
for t, rows in units:
    for j in rows:
        assert (t, j) not in cov
        cov[(t, j)] = 1
assert len(cov) == 63
steps = []
for t, rows in units:
    for ks in range(3):
        steps.append((t, ks, rows))
NS = len(steps)
def row_group(t, j):
    ky = t // 3
    return (2 * j + 1 + 2 * ky) // 4
last_use_row = {}
for i, (t, ks, rows) in enumerate(steps):
    for j in rows:
        last_use_row[j] = i

emit_wtap(0)
emit_row_setup(0)
for j in range(5):
    emit_row_instr(0, j)
pend = [("W", 1), ("R", 1), ("W", 2), ("R", 2), ("W", 3), ("R", 3), ("R", 4)]
pend_flat = []
for k, a in pend:
    if k == "W":
        pend_flat.append(("W", a))
    else:
        pend_flat.append(("Rs", a))
        for j in range(5):
            pend_flat.append(("Ri", a, j))
NPRE = int(os.environ.get("NPRE", "7"))
def issue_item(it):
    if it[0] == "W":
        emit_wtap(it[1])
    elif it[0] == "Rs":
        emit_row_setup(it[1])
    else:
        emit_row_instr(it[1], it[2])
for _ in range(NPRE):
    issue_item(pend_flat.pop(0))
e(f"    v_and_b32 v{V_T0}, 15, v{V_LANE}")
e(f"    v_lshrrev_b32 v{V_T1}, 4, v{V_LANE}")
e(f"    s_and_b32 s{S_T0}, s{S_WAVE}, 1")
e(f"    s_mul_i32 s{S_T0}, s{S_T0}, {ROWB}")
e(f"    v_mul_u32_u24 v{V_A0}, {PSTR}, v{V_T0}")
e(f"    v_lshl_add_u32 v{V_A0}, v{V_T1}, 4, v{V_A0}")
e(f"    v_add_u32 v{V_A0}, s{S_T0}, v{V_A0}")
e(f"    v_add_u32 v{V_A1}, {8*ROWB}, v{V_A0}")
e(f"    v_lshrrev_b32 v{V_T2}, 2, v{V_T0}")
e(f"    v_and_b32 v{V_T3}, 3, v{V_T0}")
e(f"    v_lshl_add_u32 v{V_T2}, v{V_T1}, 3, v{V_T2}")
e(f"    v_mul_u32_u24 v{V_T2}, 192, v{V_T2}")
e(f"    s_lshr_b32 s{S_T1}, s{S_WAVE}, 1")
e(f"    s_mul_i32 s{S_T1}, s{S_T1}, 96")
e(f"    s_add_u32 s{S_T1}, s{S_T1}, {WB}")
e(f"    v_add_u32 v{V_T2}, s{S_T1}, v{V_T2}")
e(f"    v_lshl_add_u32 v{V_B01lo}, v{V_T3}, 4, v{V_T2}")
e(f"    v_lshl_add_u32 v{V_B2lo}, v{V_T3}, 3, v{V_T2}")
e(f"    v_add_u32 v{V_B2lo}, 64, v{V_B2lo}")
e(f"    v_add_u32 v{V_B01hi}, {2*TAPB}, v{V_B01lo}")
e(f"    v_add_u32 v{V_B2hi}, {2*TAPB}, v{V_B2lo}")
e(f"    v_mul_u32_u24 v{V_O1}, 192, v{V_T0}")
e(f"    s_lshr_b32 s{S_T1}, s{S_WAVE}, 1")
e(f"    s_mul_i32 s{S_T1}, s{S_T1}, 96")
e(f"    v_add_u32 v{V_O1}, s{S_T1}, v{V_O1}")
e(f"    v_lshl_add_u32 v{V_O2}, v{V_T1}, 3, v{V_O1}")
e(f"    v_add_u32 v{V_O2}, 64, v{V_O2}")
e(f"    v_lshl_add_u32 v{V_O1}, v{V_T1}, 4, v{V_O1}")
e(f"    s_and_b32 s{S_T0}, s{S_WAVE}, 1")
e(f"    s_add_u32 s{S_T0}, s{S_T0}, s{S_Y0}")
e(f"    s_mul_i32 s{S_T0}, s{S_T0}, 224")
e(f"    s_add_u32 s{S_T0}, s{S_T0}, s{S_X0}")
e(f"    s_mul_i32 s{S_OBASE}, s{S_T0}, 192")

def w_reads(step):
    tap, ks = divmod(step, 3)
    slot = tap % NSLOT
    r = []
    for t in range(3):
        for half in range(2):
            off = (slot % 2) * TAPB + ks * 32 * 192 + half * 4 * 192 + (8 if t == 1 else 0)
            if slot < 2:
                base = V_B2lo if t == 2 else V_B01lo
            else:
                base = V_B2hi if t == 2 else V_B01hi
            p, d = wreg(step, t)
            d += half * 2
            r.append(f"    ds_read_b64_tr_b16 {p}[{d}:{d+1}], v{base} offset:{off}")
    return r

def p_reads(step, rows, buf):
    tap, ks = divmod(step, 3)
    ky, kx = divmod(tap, 3)
    r = []
    for n, j in enumerate(rows):
        if j < 4:
            base, jj = V_A0, j
        else:
            base, jj = V_A1, j - 4
        off = ((2 * jj + 2 * ky) * HC + 2 * kx) * PSTR + ks * 64
        d = PA + buf * 28 + n * 4
        r.append(f"    ds_read_b128 v[{d}:{d+3}], v{base} offset:{off}")
    return r

def store_row(j, acc0, k):
    st = V_ST + (k % 2) * 6
    r = []
    for q in range(6):
        r.append(f"    v_cvt_pk_bf16_f32 v{st+q}, v{acc0+2*q}, v{acc0+2*q+1}")
    r.append(f"    s_add_u32 s{S_T3}, s{S_OBASE}, {2*j*224*192}")
    r.append(f"    buffer_store_dwordx4 v[{st}:{st+3}], v{V_O1}, s[{S_O}:{S_O+3}], s{S_T3} offen")
    r.append(f"    buffer_store_dwordx2 v[{st+4}:{st+5}], v{V_O2}, s[{S_O}:{S_O+3}], s{S_T3} offen")
    return r


satisfied = set()
w_in_regs = {}
next_wtap = 4
def needs(i):
    t, ks, rows = steps[i]
    n = set()
    if (t, ks) not in w_in_regs:
        n.add(("W", t))
    for j in rows:
        n.add(("R", row_group(t, j)))
    return n

def ensure(i, cur):
    global next_wtap
    n = needs(i) - satisfied
    if not n:
        return
    if ("W", 6) in n:
        n |= {("R", k) for k in range(5)} - satisfied
    def pending_has(tg):
        for it in pend_flat:
            if tg[0] == "W" and it == ("W", tg[1]):
                return True
            if tg[0] == "R" and it[0] in ("Rs", "Ri") and it[1] == tg[1]:
                return True
        return False
    for tg in n:
        while pending_has(tg):
            issue_item(pend_flat.pop(0))
        assert tg in queue, tg
    wait_for(n)
    e("    s_barrier")
    satisfied.update(n)
    while next_wtap <= 8:
        old = next_wtap - NSLOT
        if all((old, k) in w_in_regs and w_in_regs[(old, k)] <= cur - 2 for k in range(3)):
            emit_wtap(next_wtap)
            next_wtap += 1
        else:
            break

def reads(i, buf, cur):
    t, ks, rows = steps[i]
    r = []
    if (t, ks) not in w_in_regs:
        r += w_reads(t * 3 + ks)
        w_in_regs[(t, ks)] = cur
    r += p_reads(t * 3 + ks, rows, buf)
    return r

if DEBUG:
    e("    s_memtime s[72:73]")
ensure(0, -1)
if DEBUG:
    e("    s_memtime s[74:75]")
for r in reads(0, 0, -1):
    e(r)
started = set()
store_q = []
nst = 0
for i in range(NS):
    t, ks, rows = steps[i]
    buf = i % 2
    if i + 1 < NS:
        ensure(i + 1, i)
    e("    s_waitcnt lgkmcnt(0)")
    nxt = reads(i + 1, 1 - buf, i) if i + 1 < NS else []
    nm = 3 * len(rows)
    m = 0
    extra = []
    if store_q and store_q[0][0] <= i:
        _, j = store_q.pop(0)
        extra = store_row(j, ACC + j * 12, nst); nst += 1
    for n, j in enumerate(rows):
        for tt in range(3):
            acc = ACC + (j * 3 + tt) * 4
            p, a = wreg(t * 3 + ks, tt)
            b = PA + buf * 28 + n * 4
            c = f"v[{acc}:{acc+3}]" if (j, tt) in started else "0"
            started.add((j, tt))
            e(f"    v_mfma_f32_16x16x32_bf16 v[{acc}:{acc+3}], {p}[{a}:{a+3}], v[{b}:{b+3}], {c}")
            if m < len(nxt):
                e(nxt[m])
            if m == nm - 1:
                for r in nxt[nm:]:
                    e(r)
            if m == 1 and pend_flat:
                it = pend_flat.pop(0)
                issue_item(it)
                if it[0] == "Rs":
                    issue_item(pend_flat.pop(0))
            m += 1
    for r in extra:
        e(r)
        if "buffer_store" in r:
            queue.append(("S", 0))
    for j in rows:
        if last_use_row[j] == i:
            store_q.append((i + 2, j))
assert not pend_flat and next_wtap == 9
if DEBUG:
    e("    s_memtime s[76:77]")
    e("    s_memtime s[86:87]")
e("    s_nop 7")
e("    s_nop 7")
for _, j in store_q:
    for r in store_row(j, ACC + j * 12, nst):
        e(r)
    nst += 1
if DEBUG:
    e("    s_waitcnt vmcnt(0)")
    e("    s_memtime s[78:79]")
    e("    s_waitcnt lgkmcnt(0)")
    e("    s_mov_b32 s80, s68")
    e("    s_mov_b32 s81, s69")
    e("    s_mov_b32 s82, 256")
    e("    s_mov_b32 s83, 0x00020000")
    regs = [72, 74, 76, 86, 78]
    for q, r in enumerate(regs):
        e(f"    s_sub_u32 s{r}, s{r}, s70")
        e(f"    v_mov_b32 v{20+q}, s{r}")
    e("    v_mov_b32 v30, 0")
    e("    s_mov_b64 exec, 1")
    for q in range(5):
        e(f"    buffer_atomic_umax v{20+q}, v30, s[80:83], 0 offen offset:{4*q}")
    for q in range(5):
        e(f"    v_not_b32 v{20+q}, v{20+q}")
    for q in range(5):
        e(f"    buffer_atomic_umax v{20+q}, v30, s[80:83], 0 offen offset:{32+4*q}")
e("L_done:")
e("    s_endpgm")
e('.section .rodata,"a"')
e(".p2align 6")
e(".amdhsa_kernel standalone__dilated_atrous__vision_kernel")
e("  .amdhsa_next_free_vgpr 512")
e("  .amdhsa_next_free_sgpr 96")
e("  .amdhsa_accum_offset 256")
e("  .amdhsa_group_segment_fixed_size 0")
e("  .amdhsa_kernarg_size 40")
e("  .amdhsa_user_sgpr_count 2")
e("  .amdhsa_user_sgpr_kernarg_segment_ptr 1")
e("  .amdhsa_system_sgpr_workgroup_id_x 1")
e(".end_amdhsa_kernel")

path = sys.argv[1] if len(sys.argv) > 1 else "standalone__dilated_atrous__vision.s"
open(path, "w").write("\n".join(out) + "\n")
print("wrote", path, len(out), "lines")
```

```python
import sys, os

H = W = 224
C = 96
TH, TW = 14, 16
HC = TW + 4
HRA = 20
PSTR = 224
ROWB = HC * PSTR
WB = HRA * ROWB
TAPB = 18432
NSLOT = 4
LDS_TOTAL = WB + NSLOT * TAPB
XBYTES = H * W * C * 2
WBYTES = 9 * TAPB
BIG = 0x40000000

DEBUG = len(sys.argv) > 2
TL = int(os.environ.get("TL", "0"))
STF = os.environ.get("STF", "")
TLREG = [52]

out = []
def e(s=""):
    out.append(s)

HEADER = open("standalone__dilated_atrous__vision.s.ref").read().split("; Override launch")[0]
e(HEADER.rstrip())
e(f"; @launch grid=(224,1,1) block=(256,1,1) lds={LDS_TOTAL}")
e('.amdgcn_target "amdgcn-amd-amdhsa--gfx950"')
e(".text")
e(".globl standalone__dilated_atrous__vision_kernel")
e(".p2align 8")
e(".type standalone__dilated_atrous__vision_kernel,@function")
e("standalone__dilated_atrous__vision_kernel:")

S_X, S_Wt, S_O = 8, 12, 16
S_WAVE = 20
S_Y0, S_X0, S_TX = 21, 22, 23
S_T0, S_T1, S_T2, S_T3 = 24, 25, 26, 27
S_M0 = 28
S_ROWOFF = 29
S_WOFF = 30
S_OBASE = 31
S_BIG = 32
S_ADJ = 33
S_RM0 = 36
S_WK = 44
ROT = int(os.environ.get("ROT", "1"))
V_LANE = 1
V_INORM, V_ILEFT, V_IRIGHT = 2, 3, 4
V_WOFF = 5
V_A0, V_A1 = 6, 7
V_B01lo, V_B2lo, V_B01hi, V_B2hi = 8, 9, 10, 11
V_O1, V_O2 = 12, 13
V_T0, V_T1, V_T2, V_T3 = 14, 15, 16, 17
V_ST = 20
ACC = 32
PA = 116
WV = 184

def wreg(step, t):
    if step < 21:
        return "a", step * 12 + t * 4
    return "v", WV + (step - 21) * 12 + t * 4

e("    s_cmp_ge_u32 s2, 224")
e("    s_cbranch_scc1 L_done")
if TL:
    e("    s_memtime s[50:51]")
    e("    s_load_dwordx2 s[100:101], s[0:1], 24")
if DEBUG:
    e("    s_memtime s[70:71]")
    e("    s_load_dwordx2 s[68:69], s[0:1], 24")
e("    s_load_dwordx4 s[4:7], s[0:1], 0")
e("    s_load_dwordx2 s[34:35], s[0:1], 16")
e(f"    v_and_b32 v{V_LANE}, 63, v0")
e(f"    v_lshrrev_b32 v{V_T0}, 6, v0")
e("    s_nop 0")
e(f"    v_readfirstlane_b32 s{S_WAVE}, v{V_T0}")
e(f"    s_and_b32 s{S_T3}, s2, 7")
e(f"    s_lshr_b32 s{S_T2}, s2, 3")
e(f"    s_cmp_ge_u32 s{S_T2}, 14")
e(f"    s_cselect_b32 s{S_T1}, 1, 0")
e(f"    s_cselect_b32 s{S_T0}, 14, 0")
e(f"    s_sub_u32 s{S_TX}, s{S_T2}, s{S_T0}")
e(f"    s_lshl_b32 s{S_T3}, s{S_T3}, 1")
e(f"    s_add_u32 s{S_T1}, s{S_T1}, s{S_T3}")
e(f"    s_mul_i32 s{S_Y0}, s{S_T1}, {TH}")
e(f"    s_lshl_b32 s{S_X0}, s{S_TX}, 4")
e(f"    s_mov_b32 s{S_BIG}, {BIG}")
e(f"    s_cmp_eq_u32 s{S_TX}, 0")
e(f"    s_cselect_b32 s{S_ADJ}, 384, 0")
e(f"    v_mul_u32_u24 v{V_T0}, 4682, v{V_LANE}")
e(f"    v_lshrrev_b32 v{V_T0}, 16, v{V_T0}")
e(f"    v_mul_u32_u24 v{V_T1}, 14, v{V_T0}")
e(f"    v_sub_u32 v{V_T1}, v{V_LANE}, v{V_T1}")
e(f"    v_mul_u32_u24 v{V_T2}, 192, v{V_T0}")
e(f"    v_lshl_add_u32 v{V_INORM}, v{V_T1}, 4, v{V_T2}")
e(f"    v_mov_b32 v{V_T3}, {BIG}")
e(f"    v_mov_b32 v{V_ILEFT}, v{V_INORM}")
e(f"    v_mov_b32 v{V_IRIGHT}, v{V_INORM}")
e(f"    s_cmp_eq_u32 s{S_TX}, 0")
e("    s_cbranch_scc0 L_notleft")
e(f"    v_subrev_u32 v{V_T2}, 384, v{V_INORM}")
e(f"    v_cmp_lt_u32 vcc, 1, v{V_T0}")
e("    s_nop 1")
e(f"    v_cndmask_b32 v{V_ILEFT}, v{V_T3}, v{V_T2}, vcc")
e("L_notleft:")
e(f"    s_cmp_eq_u32 s{S_TX}, 13")
e("    s_cbranch_scc0 L_notright")
e(f"    v_cmp_gt_u32 vcc, 2, v{V_T0}")
e("    s_nop 1")
e(f"    v_cndmask_b32 v{V_IRIGHT}, v{V_T3}, v{V_INORM}, vcc")
e("L_notright:")
e(f"    v_lshlrev_b32 v{V_WOFF}, 4, v{V_LANE}")
if ROT:
    e(f"    s_lshr_b32 s{S_T0}, s2, 3")
else:
    e(f"    s_mov_b32 s{S_T0}, 0")
e(f"    s_add_u32 s{S_T1}, s{S_T0}, s{S_WAVE}")
e(f"    s_and_b32 s{S_T1}, s{S_T1}, 3")
e(f"    s_mul_i32 s{S_WOFF}, s{S_T1}, 4608")
e(f"    s_lshr_b32 s{S_T0}, s{S_T0}, 2")
for k in range(4):
    e(f"    s_add_u32 s{S_T1}, s{S_T0}, {k}")
    e(f"    s_and_b32 s{S_T1}, s{S_T1}, 3")
    e(f"    s_lshl_b32 s{S_T1}, s{S_T1}, 10")
    e(f"    s_add_u32 s{S_WK+k}, s{S_T1}, s{S_WOFF}")
e(f"    s_add_u32 s{S_WK+4}, s{S_WOFF}, 4096")
imask = 0
for l in range(56):
    if l % 14 < 12:
        imask |= 1 << l
e(f"    s_mov_b32 s40, 0x{imask & 0xffffffff:08x}")
e(f"    s_mov_b32 s41, 0x{imask >> 32:08x}")
e("    s_waitcnt lgkmcnt(0)")
for (r, lo, n) in ((S_X, 4, XBYTES), (S_Wt, 6, WBYTES), (S_O, 34, XBYTES)):
    e(f"    s_mov_b32 s{r}, s{lo}")
    e(f"    s_mov_b32 s{r+1}, s{lo+1}")
    e(f"    s_mov_b32 s{r+2}, {n}")
    e(f"    s_mov_b32 s{r+3}, 0x00020000")

queue = []
def wait_for(tags):
    last = -1
    for i, t in enumerate(queue):
        if t in tags:
            last = i
    n = len(queue) - 1 - last
    assert n <= 63
    e(f"    s_waitcnt vmcnt({n})")

def emit_wtap(tap):
    slot = tap % NSLOT
    for k in range(5):
        if k == 4:
            e("    s_mov_b32 exec_hi, 0")
        e(f"    s_add_u32 m0, s{S_WK+k}, {WB + slot*TAPB}")
        e(f"    s_add_u32 s{S_T2}, s{S_WK+k}, {tap*TAPB}")
        e(f"    buffer_load_dwordx4 v{V_WOFF}, s[{S_Wt}:{S_Wt+3}], s{S_T2} offen lds")
    e("    s_mov_b32 exec_hi, -1")
    queue.extend([("W", tap)] * 5)

def emit_row_setup(it):
    e(f"    s_add_u32 s{S_T0}, s{S_WAVE}, {4*it}")
    e(f"    s_add_u32 s{S_T1}, s{S_T0}, s{S_Y0}")
    e(f"    s_sub_u32 s{S_T1}, s{S_T1}, 2")
    e(f"    s_mul_i32 s{S_T2}, s{S_T1}, 224")
    e(f"    s_add_u32 s{S_T2}, s{S_T2}, s{S_X0}")
    e(f"    s_sub_u32 s{S_T2}, s{S_T2}, 2")
    e(f"    s_mul_i32 s{S_ROWOFF}, s{S_T2}, 192")
    e(f"    s_cmp_lt_u32 s{S_T1}, 224")
    e(f"    s_cselect_b32 s{S_ROWOFF}, s{S_ROWOFF}, s{S_BIG}")
    if it == 4:
        e(f"    s_cmp_lt_u32 s{S_T0}, 18")
        e(f"    s_cselect_b32 s{S_ROWOFF}, s{S_ROWOFF}, s{S_BIG}")
    e(f"    s_mul_i32 s{S_RM0}, s{S_T0}, {ROWB}")

def emit_row_instr(it, j):
    e("    s_mov_b64 exec, s[40:41]")
    if j == 0:
        e(f"    s_add_u32 s{S_T2}, s{S_ROWOFF}, s{S_ADJ}")
        e(f"    s_mov_b32 m0, s{S_RM0}")
        v = V_ILEFT
    else:
        e(f"    s_add_u32 s{S_T2}, s{S_ROWOFF}, {j*4*192}")
        e(f"    s_add_u32 s{S_M0}, s{S_RM0}, {j*4*PSTR}")
        e(f"    s_mov_b32 m0, s{S_M0}")
        v = V_IRIGHT if j == 4 else V_INORM
    e("    s_nop 0")
    e(f"    buffer_load_dwordx4 v{v}, s[{S_X}:{S_X+3}], s{S_T2} offen lds")
    e("    s_mov_b64 exec, -1")
    queue.append(("R", it))


SCHED = os.environ.get("SCHED", "A")
if SCHED == "A":
    units = [(0,[0,1]), (1,[0,1]), (0,[2,3]), (1,[2,3]), (2,[0,1,2,3]),
             (0,[4,5]), (1,[4,5]), (2,[4,5]), (3,[0,1,2,3,4]),
             (0,[6]), (1,[6]), (2,[6]), (3,[5,6]), (4,list(range(7))),
             (5,list(range(7))), (6,list(range(7)))]
    for j in range(7):
        units += [(7,[j]), (8,[j])]
elif SCHED == "P":
    units = [(0,[0,1]), (1,[0,1]), (0,[2,3]), (1,[2,3]), (2,[0,1,2,3]),
             (0,[4,5]), (1,[4,5]), (2,[4,5]), (3,[0,1,2,3,4]),
             (0,[6]), (1,[6]), (2,[6]), (3,[5,6]), (4,list(range(7))),
             (5,list(range(7))), (6,list(range(7)))]
    units += [(7,[0,1,2]), (8,[0,1,2]), (7,[3,4]), (8,[3,4]), (7,[5,6]), (8,[5,6])]
elif SCHED == "B":
    units = [(t, list(range(7))) for t in range(7)]
    for j in range(7):
        units += [(7,[j]), (8,[j])]
cov = {}
for t, rows in units:
    for j in rows:
        assert (t, j) not in cov
        cov[(t, j)] = 1
assert len(cov) == 63
steps = []
for t, rows in units:
    for ks in range(3):
        steps.append((t, ks, rows))
NS = len(steps)
def row_group(t, j):
    ky = t // 3
    return (2 * j + 1 + 2 * ky) // 4
last_use_row = {}
for i, (t, ks, rows) in enumerate(steps):
    for j in rows:
        last_use_row[j] = i

emit_wtap(0)
emit_row_setup(0)
for j in range(5):
    emit_row_instr(0, j)
pend = [("W", 1), ("R", 1), ("W", 2), ("R", 2), ("W", 3), ("R", 3), ("R", 4)]
pend_flat = []
for k, a in pend:
    if k == "W":
        pend_flat.append(("W", a))
    else:
        pend_flat.append(("Rs", a))
        for j in range(5):
            pend_flat.append(("Ri", a, j))
NPRE = int(os.environ.get("NPRE", "7"))
def issue_item(it):
    if it[0] == "W":
        emit_wtap(it[1])
    elif it[0] == "Rs":
        emit_row_setup(it[1])
    else:
        emit_row_instr(it[1], it[2])
for _ in range(NPRE):
    issue_item(pend_flat.pop(0))
e(f"    v_and_b32 v{V_T0}, 15, v{V_LANE}")
e(f"    v_lshrrev_b32 v{V_T1}, 4, v{V_LANE}")
e(f"    s_and_b32 s{S_T0}, s{S_WAVE}, 1")
e(f"    s_mul_i32 s{S_T0}, s{S_T0}, {ROWB}")
e(f"    v_mul_u32_u24 v{V_A0}, {PSTR}, v{V_T0}")
e(f"    v_lshl_add_u32 v{V_A0}, v{V_T1}, 4, v{V_A0}")
e(f"    v_add_u32 v{V_A0}, s{S_T0}, v{V_A0}")
e(f"    v_add_u32 v{V_A1}, {8*ROWB}, v{V_A0}")
e(f"    v_lshrrev_b32 v{V_T2}, 2, v{V_T0}")
e(f"    v_and_b32 v{V_T3}, 3, v{V_T0}")
e(f"    v_lshl_add_u32 v{V_T2}, v{V_T1}, 3, v{V_T2}")
e(f"    v_mul_u32_u24 v{V_T2}, 192, v{V_T2}")
e(f"    s_lshr_b32 s{S_T1}, s{S_WAVE}, 1")
e(f"    s_mul_i32 s{S_T1}, s{S_T1}, 96")
e(f"    s_add_u32 s{S_T1}, s{S_T1}, {WB}")
e(f"    v_add_u32 v{V_T2}, s{S_T1}, v{V_T2}")
e(f"    v_lshl_add_u32 v{V_B01lo}, v{V_T3}, 4, v{V_T2}")
e(f"    v_lshl_add_u32 v{V_B2lo}, v{V_T3}, 3, v{V_T2}")
e(f"    v_add_u32 v{V_B2lo}, 64, v{V_B2lo}")
e(f"    v_add_u32 v{V_B01hi}, {2*TAPB}, v{V_B01lo}")
e(f"    v_add_u32 v{V_B2hi}, {2*TAPB}, v{V_B2lo}")
e(f"    v_mul_u32_u24 v{V_O1}, 192, v{V_T0}")
e(f"    s_lshr_b32 s{S_T1}, s{S_WAVE}, 1")
e(f"    s_mul_i32 s{S_T1}, s{S_T1}, 96")
e(f"    v_add_u32 v{V_O1}, s{S_T1}, v{V_O1}")
e(f"    v_lshl_add_u32 v{V_O2}, v{V_T1}, 3, v{V_O1}")
e(f"    v_add_u32 v{V_O2}, 64, v{V_O2}")
e(f"    v_lshl_add_u32 v{V_O1}, v{V_T1}, 4, v{V_O1}")
e(f"    s_and_b32 s{S_T0}, s{S_WAVE}, 1")
e(f"    s_add_u32 s{S_T0}, s{S_T0}, s{S_Y0}")
e(f"    s_mul_i32 s{S_T0}, s{S_T0}, 224")
e(f"    s_add_u32 s{S_T0}, s{S_T0}, s{S_X0}")
e(f"    s_mul_i32 s{S_OBASE}, s{S_T0}, 192")

def w_reads(step):
    tap, ks = divmod(step, 3)
    slot = tap % NSLOT
    r = []
    for t in range(3):
        for half in range(2):
            off = (slot % 2) * TAPB + ks * 32 * 192 + half * 4 * 192 + (8 if t == 1 else 0)
            if slot < 2:
                base = V_B2lo if t == 2 else V_B01lo
            else:
                base = V_B2hi if t == 2 else V_B01hi
            p, d = wreg(step, t)
            d += half * 2
            r.append(f"    ds_read_b64_tr_b16 {p}[{d}:{d+1}], v{base} offset:{off}")
    return r

def p_reads(step, rows, buf):
    tap, ks = divmod(step, 3)
    ky, kx = divmod(tap, 3)
    r = []
    for n, j in enumerate(rows):
        if j < 4:
            base, jj = V_A0, j
        else:
            base, jj = V_A1, j - 4
        off = ((2 * jj + 2 * ky) * HC + 2 * kx) * PSTR + ks * 64
        d = PA + buf * 28 + n * 4
        r.append(f"    ds_read_b128 v[{d}:{d+3}], v{base} offset:{off}")
    return r

def store_row(j, acc0, k):
    st = V_ST + (k % 2) * 6
    r = []
    for q in range(6):
        r.append(f"    v_cvt_pk_bf16_f32 v{st+q}, v{acc0+2*q}, v{acc0+2*q+1}")
    r.append(f"    s_add_u32 s{S_T3}, s{S_OBASE}, {2*j*224*192}")
    r.append(f"    buffer_store_dwordx4 v[{st}:{st+3}], v{V_O1}, s[{S_O}:{S_O+3}], s{S_T3} offen{STF}")
    r.append(f"    buffer_store_dwordx2 v[{st+4}:{st+5}], v{V_O2}, s[{S_O}:{S_O+3}], s{S_T3} offen{STF}")
    return r


satisfied = set()
w_in_regs = {}
next_wtap = 4
def needs(i):
    t, ks, rows = steps[i]
    n = set()
    if (t, ks) not in w_in_regs:
        n.add(("W", t))
    for j in rows:
        n.add(("R", row_group(t, j)))
    return n

def ensure(i, cur):
    global next_wtap
    n = needs(i) - satisfied
    if not n:
        return
    if ("W", 6) in n:
        n |= {("R", k) for k in range(5)} - satisfied
    def pending_has(tg):
        for it in pend_flat:
            if tg[0] == "W" and it == ("W", tg[1]):
                return True
            if tg[0] == "R" and it[0] in ("Rs", "Ri") and it[1] == tg[1]:
                return True
        return False
    for tg in n:
        while pending_has(tg):
            issue_item(pend_flat.pop(0))
        assert tg in queue, tg
    if TL and TLREG[0] > 52:
        e(f"    s_memtime s[{TLREG[0]}:{TLREG[0]+1}]"); TLREG[0] += 2
    wait_for(n)
    e("    s_barrier")
    if TL:
        e(f"    s_memtime s[{TLREG[0]}:{TLREG[0]+1}]"); TLREG[0] += 2
    satisfied.update(n)
    while next_wtap <= 8:
        old = next_wtap - NSLOT
        if all((old, k) in w_in_regs and w_in_regs[(old, k)] <= cur - 2 for k in range(3)):
            emit_wtap(next_wtap)
            next_wtap += 1
        else:
            break

def reads(i, buf, cur):
    t, ks, rows = steps[i]
    r = []
    if (t, ks) not in w_in_regs:
        r += w_reads(t * 3 + ks)
        w_in_regs[(t, ks)] = cur
    r += p_reads(t * 3 + ks, rows, buf)
    return r

if DEBUG:
    e("    s_memtime s[72:73]")
ensure(0, -1)
if DEBUG:
    e("    s_memtime s[74:75]")
for r in reads(0, 0, -1):
    e(r)
started = set()
store_q = []
nst = 0
for i in range(NS):
    t, ks, rows = steps[i]
    buf = i % 2
    if i + 1 < NS:
        ensure(i + 1, i)
    e("    s_waitcnt lgkmcnt(0)")
    nxt = reads(i + 1, 1 - buf, i) if i + 1 < NS else []
    nm = 3 * len(rows)
    m = 0
    extra = []
    if store_q and store_q[0][0] <= i:
        _, j = store_q.pop(0)
        extra = store_row(j, ACC + j * 12, nst); nst += 1
    for n, j in enumerate(rows):
        for tt in range(3):
            acc = ACC + (j * 3 + tt) * 4
            p, a = wreg(t * 3 + ks, tt)
            b = PA + buf * 28 + n * 4
            c = f"v[{acc}:{acc+3}]" if (j, tt) in started else "0"
            started.add((j, tt))
            e(f"    v_mfma_f32_16x16x32_bf16 v[{acc}:{acc+3}], {p}[{a}:{a+3}], v[{b}:{b+3}], {c}")
            if m < len(nxt):
                e(nxt[m])
            if m == nm - 1:
                for r in nxt[nm:]:
                    e(r)
            if m == 1 and pend_flat:
                it = pend_flat.pop(0)
                issue_item(it)
                if it[0] == "Rs":
                    issue_item(pend_flat.pop(0))
            m += 1
    for r in extra:
        e(r)
        if "buffer_store" in r:
            queue.append(("S", 0))
    for j in rows:
        if last_use_row[j] == i:
            store_q.append((i + 2, j))
assert not pend_flat and next_wtap == 9
if DEBUG:
    e("    s_memtime s[76:77]")
    e("    s_memtime s[86:87]")
if TL:
    e("    s_memtime s[98:99]")
e("    s_nop 7")
e("    s_nop 7")
for _, j in store_q:
    for r in store_row(j, ACC + j * 12, nst):
        e(r)
    nst += 1
if DEBUG:
    e("    s_waitcnt vmcnt(0)")
    e("    s_memtime s[78:79]")
    e("    s_waitcnt lgkmcnt(0)")
    e("    s_mov_b32 s80, s68")
    e("    s_mov_b32 s81, s69")
    e("    s_mov_b32 s82, 256")
    e("    s_mov_b32 s83, 0x00020000")
    regs = [72, 74, 76, 86, 78]
    for q, r in enumerate(regs):
        e(f"    s_sub_u32 s{r}, s{r}, s70")
        e(f"    v_mov_b32 v{20+q}, s{r}")
    e("    v_mov_b32 v30, 0")
    e("    s_mov_b64 exec, 1")
    for q in range(5):
        e(f"    buffer_atomic_umax v{20+q}, v30, s[80:83], 0 offen offset:{4*q}")
    for q in range(5):
        e(f"    v_not_b32 v{20+q}, v{20+q}")
    for q in range(5):
        e(f"    buffer_atomic_umax v{20+q}, v30, s[80:83], 0 offen offset:{32+4*q}")
if TL:
    e("    s_waitcnt vmcnt(0)")
    e("    s_memtime s[8:9]")
    e("    s_waitcnt lgkmcnt(0)")
    e(f"    s_cmp_eq_u32 s2, {TL}")
    e("    s_cbranch_scc0 L_done")
    e(f"    s_cmp_eq_u32 s{S_WAVE}, 0")
    e("    s_cbranch_scc0 L_done")
    e("    s_mov_b32 s12, s100")
    e("    s_mov_b32 s13, s101")
    e("    s_mov_b32 s14, 256")
    e("    s_mov_b32 s15, 0x00020000")
    regs = list(range(52, TLREG[0], 2)) + [98, 8]
    e("    v_mov_b32 v30, 0")
    e("    s_mov_b64 exec, 1")
    for q, r in enumerate(regs):
        e(f"    s_sub_u32 s{r}, s{r}, s50")
        e(f"    v_mov_b32 v31, s{r}")
        e(f"    buffer_store_dword v31, v30, s[12:15], 0 offen offset:{4*q}")
e("L_done:")
e("    s_endpgm")
e('.section .rodata,"a"')
e(".p2align 6")
e(".amdhsa_kernel standalone__dilated_atrous__vision_kernel")
e("  .amdhsa_next_free_vgpr 512")
e("  .amdhsa_next_free_sgpr 102")
e("  .amdhsa_accum_offset 256")
e("  .amdhsa_group_segment_fixed_size 0")
e("  .amdhsa_kernarg_size 40")
e("  .amdhsa_user_sgpr_count 2")
e("  .amdhsa_user_sgpr_kernarg_segment_ptr 1")
e("  .amdhsa_system_sgpr_workgroup_id_x 1")
e(".end_amdhsa_kernel")

path = sys.argv[1] if len(sys.argv) > 1 else "standalone__dilated_atrous__vision.s"
open(path, "w").write("\n".join(out) + "\n")
print("wrote", path, len(out), "lines")
```

```python
import sys, os

H = W = 224
C = 96
TH, TW = 14, 16
HC = TW + 4
HRA = 20
PSTR = 224
ROWB = HC * PSTR
WB = HRA * ROWB
TAPB = 18432
NSLOT = 4
LDS_TOTAL = WB + NSLOT * TAPB
XBYTES = H * W * C * 2
WBYTES = 9 * TAPB
BIG = 0x40000000

DEBUG = len(sys.argv) > 2
TL = int(os.environ.get("TL", "0"))
SP = int(os.environ.get("SP", "1"))
STF = os.environ.get("STF", "")
TLREG = [52]

out = []
def e(s=""):
    out.append(s)

HEADER = open("standalone__dilated_atrous__vision.s.ref").read().split("; Override launch")[0]
e(HEADER.rstrip())
e(f"; @launch grid=(224,1,1) block=(256,1,1) lds={LDS_TOTAL}")
e('.amdgcn_target "amdgcn-amd-amdhsa--gfx950"')
e(".text")
e(".globl standalone__dilated_atrous__vision_kernel")
e(".p2align 8")
e(".type standalone__dilated_atrous__vision_kernel,@function")
e("standalone__dilated_atrous__vision_kernel:")

S_X, S_Wt, S_O = 8, 12, 16
S_WAVE = 20
S_Y0, S_X0, S_TX = 21, 22, 23
S_T0, S_T1, S_T2, S_T3 = 24, 25, 26, 27
S_M0 = 28
S_ROWOFF = 29
S_WOFF = 30
S_OBASE = 31
S_BIG = 32
S_ADJ = 33
S_RM0 = 36
S_WK = 44
ROT = int(os.environ.get("ROT", "1"))
V_LANE = 1
V_INORM, V_ILEFT, V_IRIGHT = 2, 3, 4
V_WOFF = 5
V_A0, V_A1 = 6, 7
V_B01lo, V_B2lo, V_B01hi, V_B2hi = 8, 9, 10, 11
V_O1, V_O2 = 12, 13
V_T0, V_T1, V_T2, V_T3 = 14, 15, 16, 17
V_ST = 20
ACC = 32
PA = 116
WV = 184

def wreg(step, t):
    if step < 21:
        return "a", step * 12 + t * 4
    return "v", WV + (step - 21) * 12 + t * 4

e("    s_cmp_ge_u32 s2, 224")
e("    s_cbranch_scc1 L_done")
if TL:
    e("    s_memtime s[50:51]")
    e("    s_memrealtime s[38:39]")
    e("    s_load_dwordx2 s[100:101], s[0:1], 24")
if DEBUG:
    e("    s_memtime s[70:71]")
    e("    s_load_dwordx2 s[68:69], s[0:1], 24")
e("    s_load_dwordx4 s[4:7], s[0:1], 0")
e("    s_load_dwordx2 s[34:35], s[0:1], 16")
e(f"    v_and_b32 v{V_LANE}, 63, v0")
e(f"    v_lshrrev_b32 v{V_T0}, 6, v0")
e("    s_nop 0")
e(f"    v_readfirstlane_b32 s{S_WAVE}, v{V_T0}")
e(f"    s_and_b32 s{S_T3}, s2, 7")
e(f"    s_lshr_b32 s{S_T2}, s2, 3")
e(f"    s_cmp_ge_u32 s{S_T2}, 14")
e(f"    s_cselect_b32 s{S_T1}, 1, 0")
e(f"    s_cselect_b32 s{S_T0}, 14, 0")
e(f"    s_sub_u32 s{S_TX}, s{S_T2}, s{S_T0}")
e(f"    s_lshl_b32 s{S_T3}, s{S_T3}, 1")
e(f"    s_add_u32 s{S_T1}, s{S_T1}, s{S_T3}")
e(f"    s_mul_i32 s{S_Y0}, s{S_T1}, {TH}")
e(f"    s_lshl_b32 s{S_X0}, s{S_TX}, 4")
e(f"    s_mov_b32 s{S_BIG}, {BIG}")
e(f"    s_cmp_eq_u32 s{S_TX}, 0")
e(f"    s_cselect_b32 s{S_ADJ}, 384, 0")
e(f"    v_mul_u32_u24 v{V_T0}, 4682, v{V_LANE}")
e(f"    v_lshrrev_b32 v{V_T0}, 16, v{V_T0}")
e(f"    v_mul_u32_u24 v{V_T1}, 14, v{V_T0}")
e(f"    v_sub_u32 v{V_T1}, v{V_LANE}, v{V_T1}")
e(f"    v_mul_u32_u24 v{V_T2}, 192, v{V_T0}")
e(f"    v_lshl_add_u32 v{V_INORM}, v{V_T1}, 4, v{V_T2}")
e(f"    v_mov_b32 v{V_T3}, {BIG}")
e(f"    v_mov_b32 v{V_ILEFT}, v{V_INORM}")
e(f"    v_mov_b32 v{V_IRIGHT}, v{V_INORM}")
e(f"    s_cmp_eq_u32 s{S_TX}, 0")
e("    s_cbranch_scc0 L_notleft")
e(f"    v_subrev_u32 v{V_T2}, 384, v{V_INORM}")
e(f"    v_cmp_lt_u32 vcc, 1, v{V_T0}")
e("    s_nop 1")
e(f"    v_cndmask_b32 v{V_ILEFT}, v{V_T3}, v{V_T2}, vcc")
e("L_notleft:")
e(f"    s_cmp_eq_u32 s{S_TX}, 13")
e("    s_cbranch_scc0 L_notright")
e(f"    v_cmp_gt_u32 vcc, 2, v{V_T0}")
e("    s_nop 1")
e(f"    v_cndmask_b32 v{V_IRIGHT}, v{V_T3}, v{V_INORM}, vcc")
e("L_notright:")
e(f"    v_lshlrev_b32 v{V_WOFF}, 4, v{V_LANE}")
if ROT:
    e(f"    s_lshr_b32 s{S_T0}, s2, 3")
else:
    e(f"    s_mov_b32 s{S_T0}, 0")
e(f"    s_add_u32 s{S_T1}, s{S_T0}, s{S_WAVE}")
e(f"    s_and_b32 s{S_T1}, s{S_T1}, 3")
e(f"    s_mul_i32 s{S_WOFF}, s{S_T1}, 4608")
e(f"    s_lshr_b32 s{S_T0}, s{S_T0}, 2")
for k in range(4):
    e(f"    s_add_u32 s{S_T1}, s{S_T0}, {k}")
    e(f"    s_and_b32 s{S_T1}, s{S_T1}, 3")
    e(f"    s_lshl_b32 s{S_T1}, s{S_T1}, 10")
    e(f"    s_add_u32 s{S_WK+k}, s{S_T1}, s{S_WOFF}")
e(f"    s_add_u32 s{S_WK+4}, s{S_WOFF}, 4096")
imask = 0
for l in range(56):
    if l % 14 < 12:
        imask |= 1 << l
e(f"    s_mov_b32 s40, 0x{imask & 0xffffffff:08x}")
e(f"    s_mov_b32 s41, 0x{imask >> 32:08x}")
e("    s_waitcnt lgkmcnt(0)")
for (r, lo, n) in ((S_X, 4, XBYTES), (S_Wt, 6, WBYTES), (S_O, 34, XBYTES)):
    e(f"    s_mov_b32 s{r}, s{lo}")
    e(f"    s_mov_b32 s{r+1}, s{lo+1}")
    e(f"    s_mov_b32 s{r+2}, {n}")
    e(f"    s_mov_b32 s{r+3}, 0x00020000")

queue = []
def wait_for(tags):
    last = -1
    for i, t in enumerate(queue):
        if t in tags:
            last = i
    n = len(queue) - 1 - last
    assert n <= 63
    e(f"    s_waitcnt vmcnt({n})")

def code_wpiece(tap, k):
    slot = tap % NSLOT
    c = []
    if k == 4:
        c.append("    s_mov_b32 exec_hi, 0")
    c.append(f"    s_add_u32 m0, s{S_WK+k}, {WB + slot*TAPB}")
    c.append(f"    s_add_u32 s{S_T2}, s{S_WK+k}, {tap*TAPB}")
    c.append(f"    buffer_load_dwordx4 v{V_WOFF}, s[{S_Wt}:{S_Wt+3}], s{S_T2} offen lds")
    if k == 4:
        c.append("    s_mov_b32 exec_hi, -1")
    return c

def code_row_setup(it):
    c = []
    c.append(f"    s_add_u32 s{S_T0}, s{S_WAVE}, {4*it}")
    c.append(f"    s_add_u32 s{S_T1}, s{S_T0}, s{S_Y0}")
    c.append(f"    s_sub_u32 s{S_T1}, s{S_T1}, 2")
    c.append(f"    s_mul_i32 s{S_T2}, s{S_T1}, 224")
    c.append(f"    s_add_u32 s{S_T2}, s{S_T2}, s{S_X0}")
    c.append(f"    s_sub_u32 s{S_T2}, s{S_T2}, 2")
    c.append(f"    s_mul_i32 s{S_ROWOFF}, s{S_T2}, 192")
    c.append(f"    s_cmp_lt_u32 s{S_T1}, 224")
    c.append(f"    s_cselect_b32 s{S_ROWOFF}, s{S_ROWOFF}, s{S_BIG}")
    if it == 4:
        c.append(f"    s_cmp_lt_u32 s{S_T0}, 18")
        c.append(f"    s_cselect_b32 s{S_ROWOFF}, s{S_ROWOFF}, s{S_BIG}")
    c.append(f"    s_mul_i32 s{S_RM0}, s{S_T0}, {ROWB}")
    return c

def code_row_instr(it, j):
    c = ["    s_mov_b64 exec, s[40:41]"]
    if j == 0:
        c.append(f"    s_mov_b32 m0, s{S_RM0}")
        c.append(f"    s_add_u32 s{S_T2}, s{S_ROWOFF}, s{S_ADJ}")
        v = V_ILEFT
    else:
        c.append(f"    s_add_u32 m0, s{S_RM0}, {j*4*PSTR}")
        c.append(f"    s_add_u32 s{S_T2}, s{S_ROWOFF}, {j*4*192}")
        v = V_IRIGHT if j == 4 else V_INORM
    c.append(f"    buffer_load_dwordx4 v{v}, s[{S_X}:{S_X+3}], s{S_T2} offen lds")
    c.append("    s_mov_b64 exec, -1")
    return c

STAG = int(os.environ.get("STAG", "1"))
fifo = []
lblc = [0]
def push(code, tag, direct):
    if tag is not None:
        queue.append(tag)
    if direct or not STAG:
        for x in code:
            e(x)
        return
    if STAG == 2:
        fifo.append(code)
        return
    for w in range(4):
        lblc[0] += 1
        fifo.append([f"    s_cmp_eq_u32 s{S_WAVE}, {w}", f"    s_cbranch_scc0 L_sk{lblc[0]}"] + code + [f"L_sk{lblc[0]}:"])

def pop_fifo(n=1):
    for _ in range(n):
        if fifo:
            for x in fifo.pop(0):
                e(x)

def flush_fifo():
    while fifo:
        pop_fifo()

def emit_wtap(tap, direct=False):
    for k in range(5):
        push(code_wpiece(tap, k), ("W", tap), direct)

def emit_row_setup(it, direct=False):
    global _pending_setup
    _pending_setup = code_row_setup(it)

_pending_setup = []
def emit_row_instr(it, j, direct=False):
    global _pending_setup
    push(_pending_setup + code_row_instr(it, j), ("R", it), direct)
    _pending_setup = []

SCHED = os.environ.get("SCHED", "A")
if SCHED == "A":
    units = [(0,[0,1]), (1,[0,1]), (0,[2,3]), (1,[2,3]), (2,[0,1,2,3]),
             (0,[4,5]), (1,[4,5]), (2,[4,5]), (3,[0,1,2,3,4]),
             (0,[6]), (1,[6]), (2,[6]), (3,[5,6]), (4,list(range(7))),
             (5,list(range(7))), (6,list(range(7)))]
    for j in range(7):
        units += [(7,[j]), (8,[j])]
elif SCHED == "P":
    units = [(0,[0,1]), (1,[0,1]), (0,[2,3]), (1,[2,3]), (2,[0,1,2,3]),
             (0,[4,5]), (1,[4,5]), (2,[4,5]), (3,[0,1,2,3,4]),
             (0,[6]), (1,[6]), (2,[6]), (3,[5,6]), (4,list(range(7))),
             (5,list(range(7))), (6,list(range(7)))]
    units += [(7,[0,1,2]), (8,[0,1,2]), (7,[3,4]), (8,[3,4]), (7,[5,6]), (8,[5,6])]
elif SCHED == "B":
    units = [(t, list(range(7))) for t in range(7)]
    for j in range(7):
        units += [(7,[j]), (8,[j])]
cov = {}
for t, rows in units:
    for j in rows:
        assert (t, j) not in cov
        cov[(t, j)] = 1
assert len(cov) == 63
steps = []
for t, rows in units:
    for ks in range(3):
        steps.append((t, ks, rows))
NS = len(steps)
def row_group(t, j):
    ky = t // 3
    return (2 * j + 1 + 2 * ky) // 4
last_use_row = {}
for i, (t, ks, rows) in enumerate(steps):
    for j in rows:
        last_use_row[j] = i

emit_wtap(0, True)
emit_row_setup(0, True)
for j in range(5):
    emit_row_instr(0, j, True)
pend = [("W", 1), ("R", 1), ("W", 2), ("R", 2), ("W", 3), ("R", 3), ("R", 4)]
pend_flat = []
for k, a in pend:
    if k == "W":
        pend_flat.append(("W", a))
    else:
        pend_flat.append(("Rs", a))
        for j in range(5):
            pend_flat.append(("Ri", a, j))
NPRE = int(os.environ.get("NPRE", "7"))
def issue_item(it, direct=False):
    if it[0] == "W":
        emit_wtap(it[1], direct)
    elif it[0] == "Rs":
        emit_row_setup(it[1], direct)
    else:
        emit_row_instr(it[1], it[2], direct)
for _ in range(NPRE):
    issue_item(pend_flat.pop(0), True)
e(f"    v_and_b32 v{V_T0}, 15, v{V_LANE}")
e(f"    v_lshrrev_b32 v{V_T1}, 4, v{V_LANE}")
e(f"    s_and_b32 s{S_T0}, s{S_WAVE}, 1")
e(f"    s_mul_i32 s{S_T0}, s{S_T0}, {ROWB}")
e(f"    v_mul_u32_u24 v{V_A0}, {PSTR}, v{V_T0}")
e(f"    v_lshl_add_u32 v{V_A0}, v{V_T1}, 4, v{V_A0}")
e(f"    v_add_u32 v{V_A0}, s{S_T0}, v{V_A0}")
e(f"    v_add_u32 v{V_A1}, {8*ROWB}, v{V_A0}")
e(f"    v_lshrrev_b32 v{V_T2}, 2, v{V_T0}")
e(f"    v_and_b32 v{V_T3}, 3, v{V_T0}")
e(f"    v_lshl_add_u32 v{V_T2}, v{V_T1}, 3, v{V_T2}")
e(f"    v_mul_u32_u24 v{V_T2}, 192, v{V_T2}")
e(f"    s_lshr_b32 s{S_T1}, s{S_WAVE}, 1")
e(f"    s_mul_i32 s{S_T1}, s{S_T1}, 96")
e(f"    s_add_u32 s{S_T1}, s{S_T1}, {WB}")
e(f"    v_add_u32 v{V_T2}, s{S_T1}, v{V_T2}")
e(f"    v_lshl_add_u32 v{V_B01lo}, v{V_T3}, 4, v{V_T2}")
e(f"    v_lshl_add_u32 v{V_B2lo}, v{V_T3}, 3, v{V_T2}")
e(f"    v_add_u32 v{V_B2lo}, 64, v{V_B2lo}")
e(f"    v_add_u32 v{V_B01hi}, {2*TAPB}, v{V_B01lo}")
e(f"    v_add_u32 v{V_B2hi}, {2*TAPB}, v{V_B2lo}")
e(f"    v_mul_u32_u24 v{V_O1}, 192, v{V_T0}")
e(f"    s_lshr_b32 s{S_T1}, s{S_WAVE}, 1")
e(f"    s_mul_i32 s{S_T1}, s{S_T1}, 96")
e(f"    v_add_u32 v{V_O1}, s{S_T1}, v{V_O1}")
e(f"    v_lshl_add_u32 v{V_O2}, v{V_T1}, 3, v{V_O1}")
e(f"    v_add_u32 v{V_O2}, 64, v{V_O2}")
e(f"    v_lshl_add_u32 v{V_O1}, v{V_T1}, 4, v{V_O1}")
e(f"    s_and_b32 s{S_T0}, s{S_WAVE}, 1")
e(f"    s_add_u32 s{S_T0}, s{S_T0}, s{S_Y0}")
e(f"    s_mul_i32 s{S_T0}, s{S_T0}, 224")
e(f"    s_add_u32 s{S_T0}, s{S_T0}, s{S_X0}")
e(f"    s_mul_i32 s{S_OBASE}, s{S_T0}, 192")

def w_reads(step):
    tap, ks = divmod(step, 3)
    slot = tap % NSLOT
    r = []
    for t in range(3):
        for half in range(2):
            off = (slot % 2) * TAPB + ks * 32 * 192 + half * 4 * 192 + (8 if t == 1 else 0)
            if slot < 2:
                base = V_B2lo if t == 2 else V_B01lo
            else:
                base = V_B2hi if t == 2 else V_B01hi
            p, d = wreg(step, t)
            d += half * 2
            r.append(f"    ds_read_b64_tr_b16 {p}[{d}:{d+1}], v{base} offset:{off}")
    return r

def p_reads(step, rows, buf):
    tap, ks = divmod(step, 3)
    ky, kx = divmod(tap, 3)
    r = []
    for n, j in enumerate(rows):
        if j < 4:
            base, jj = V_A0, j
        else:
            base, jj = V_A1, j - 4
        off = ((2 * jj + 2 * ky) * HC + 2 * kx) * PSTR + ks * 64
        d = PA + buf * 28 + n * 4
        r.append(f"    ds_read_b128 v[{d}:{d+3}], v{base} offset:{off}")
    return r

def store_row(j, acc0, k):
    st = V_ST + (k % 2) * 6
    r = []
    for q in range(6):
        r.append(f"    v_cvt_pk_bf16_f32 v{st+q}, v{acc0+2*q}, v{acc0+2*q+1}")
    r.append(f"    s_add_u32 s{S_T3}, s{S_OBASE}, {2*j*224*192}")
    r.append(f"    buffer_store_dwordx4 v[{st}:{st+3}], v{V_O1}, s[{S_O}:{S_O+3}], s{S_T3} offen{STF}")
    r.append(f"    buffer_store_dwordx2 v[{st+4}:{st+5}], v{V_O2}, s[{S_O}:{S_O+3}], s{S_T3} offen{STF}")
    return r


satisfied = set()
w_in_regs = {}
next_wtap = 4
def needs(i):
    t, ks, rows = steps[i]
    n = set()
    if (t, ks) not in w_in_regs:
        n.add(("W", t))
    for j in rows:
        n.add(("R", row_group(t, j)))
    return n

def ensure(i, cur):
    global next_wtap
    n = needs(i) - satisfied
    if not n:
        return
    if ("W", 6) in n:
        n |= {("R", k) for k in range(5)} - satisfied
    def pending_has(tg):
        for it in pend_flat:
            if tg[0] == "W" and it == ("W", tg[1]):
                return True
            if tg[0] == "R" and it[0] in ("Rs", "Ri") and it[1] == tg[1]:
                return True
        return False
    for tg in n:
        while pending_has(tg):
            issue_item(pend_flat.pop(0))
        assert tg in queue, tg
    flush_fifo()
    if TL and TLREG[0] > 52:
        e(f"    s_memtime s[{TLREG[0]}:{TLREG[0]+1}]"); TLREG[0] += 2
    wait_for(n)
    e("    s_barrier")
    if TL:
        e(f"    s_memtime s[{TLREG[0]}:{TLREG[0]+1}]"); TLREG[0] += 2
    satisfied.update(n)
    while next_wtap <= 8:
        old = next_wtap - NSLOT
        if all((old, k) in w_in_regs and w_in_regs[(old, k)] <= cur - 2 for k in range(3)):
            emit_wtap(next_wtap)
            next_wtap += 1
        else:
            break

def reads(i, buf, cur):
    t, ks, rows = steps[i]
    r = []
    if (t, ks) not in w_in_regs:
        r += w_reads(t * 3 + ks)
        w_in_regs[(t, ks)] = cur
    r += p_reads(t * 3 + ks, rows, buf)
    return r

if DEBUG:
    e("    s_memtime s[72:73]")
ensure(0, -1)
if DEBUG:
    e("    s_memtime s[74:75]")
for r in reads(0, 0, -1):
    e(r)
started = set()
gm = [0]
store_q = []
nst = 0
for i in range(NS):
    t, ks, rows = steps[i]
    buf = i % 2
    if i + 1 < NS:
        ensure(i + 1, i)
    e("    s_waitcnt lgkmcnt(0)")
    nxt = reads(i + 1, 1 - buf, i) if i + 1 < NS else []
    nm = 3 * len(rows)
    m = 0
    extra = []
    if store_q and store_q[0][0] <= i:
        _, j = store_q.pop(0)
        extra = store_row(j, ACC + j * 12, nst); nst += 1
    for n, j in enumerate(rows):
        for tt in range(3):
            acc = ACC + (j * 3 + tt) * 4
            p, a = wreg(t * 3 + ks, tt)
            b = PA + buf * 28 + n * 4
            c = f"v[{acc}:{acc+3}]" if (j, tt) in started else "0"
            started.add((j, tt))
            e(f"    v_mfma_f32_16x16x32_bf16 v[{acc}:{acc+3}], {p}[{a}:{a+3}], v[{b}:{b+3}], {c}")
            if m < len(nxt):
                e(nxt[m])
            if m == nm - 1:
                for r in nxt[nm:]:
                    e(r)
            if len(fifo) < (4 if STAG == 1 else 1) and pend_flat:
                it = pend_flat.pop(0)
                issue_item(it)
                if it[0] == "Rs":
                    issue_item(pend_flat.pop(0))
            gm[0] += 1
            if gm[0] % SP == 0:
                pop_fifo()
            m += 1
    if extra:
        flush_fifo()
    for r in extra:
        e(r)
        if "buffer_store" in r:
            queue.append(("S", 0))
    for j in rows:
        if last_use_row[j] == i:
            store_q.append((i + 2, j))
flush_fifo()
assert not pend_flat and next_wtap == 9
if DEBUG:
    e("    s_memtime s[76:77]")
    e("    s_memtime s[86:87]")
if TL:
    e("    s_memtime s[98:99]")
e("    s_nop 7")
e("    s_nop 7")
for _, j in store_q:
    for r in store_row(j, ACC + j * 12, nst):
        e(r)
    nst += 1
if DEBUG:
    e("    s_waitcnt vmcnt(0)")
    e("    s_memtime s[78:79]")
    e("    s_waitcnt lgkmcnt(0)")
    e("    s_mov_b32 s80, s68")
    e("    s_mov_b32 s81, s69")
    e("    s_mov_b32 s82, 256")
    e("    s_mov_b32 s83, 0x00020000")
    regs = [72, 74, 76, 86, 78]
    for q, r in enumerate(regs):
        e(f"    s_sub_u32 s{r}, s{r}, s70")
        e(f"    v_mov_b32 v{20+q}, s{r}")
    e("    v_mov_b32 v30, 0")
    e("    s_mov_b64 exec, 1")
    for q in range(5):
        e(f"    buffer_atomic_umax v{20+q}, v30, s[80:83], 0 offen offset:{4*q}")
    for q in range(5):
        e(f"    v_not_b32 v{20+q}, v{20+q}")
    for q in range(5):
        e(f"    buffer_atomic_umax v{20+q}, v30, s[80:83], 0 offen offset:{32+4*q}")
if TL:
    e("    s_waitcnt vmcnt(0)")
    e("    s_memtime s[8:9]")
    e("    s_memrealtime s[10:11]")
    e("    s_waitcnt lgkmcnt(0)")
    e(f"    s_cmp_eq_u32 s2, {TL}")
    e("    s_cbranch_scc0 L_done")
    e(f"    s_cmp_eq_u32 s{S_WAVE}, 0")
    e("    s_cbranch_scc0 L_done")
    e("    s_mov_b32 s12, s100")
    e("    s_mov_b32 s13, s101")
    e("    s_mov_b32 s14, 256")
    e("    s_mov_b32 s15, 0x00020000")
    regs = [98, 8]
    e("    s_sub_u32 s10, s10, s38")
    e("    s_add_u32 s10, s10, s50")
    regs.append(10)
    e("    v_mov_b32 v30, 0")
    e("    s_mov_b64 exec, 1")
    for q, r in enumerate(regs):
        e(f"    s_sub_u32 s{r}, s{r}, s50")
        e(f"    v_mov_b32 v31, s{r}")
        e(f"    buffer_store_dword v31, v30, s[12:15], 0 offen offset:{4*q}")
e("L_done:")
e("    s_endpgm")
e('.section .rodata,"a"')
e(".p2align 6")
e(".amdhsa_kernel standalone__dilated_atrous__vision_kernel")
e("  .amdhsa_next_free_vgpr 512")
e("  .amdhsa_next_free_sgpr 102")
e("  .amdhsa_accum_offset 256")
e("  .amdhsa_group_segment_fixed_size 0")
e("  .amdhsa_kernarg_size 40")
e("  .amdhsa_user_sgpr_count 2")
e("  .amdhsa_user_sgpr_kernarg_segment_ptr 1")
e("  .amdhsa_system_sgpr_workgroup_id_x 1")
e(".end_amdhsa_kernel")

path = sys.argv[1] if len(sys.argv) > 1 else "standalone__dilated_atrous__vision.s"
open(path, "w").write("\n".join(out) + "\n")
print("wrote", path, len(out), "lines")
```

```python
import sys, os

H = W = 224
C = 96
TH, TW = 14, 16
HC = TW + 4
HRA = 20
PSTR = 224
ROWB = HC * PSTR
WB = HRA * ROWB
TAPB = 18432
NSLOT = 4
LDS_TOTAL = WB + NSLOT * TAPB
XBYTES = H * W * C * 2
WBYTES = 9 * TAPB
BIG = 0x40000000

DEBUG = len(sys.argv) > 2
TL = int(os.environ.get("TL", "0"))
SP = int(os.environ.get("SP", "1"))
STF = os.environ.get("STF", "")
TLREG = [52]

out = []
def e(s=""):
    out.append(s)

HEADER = open("standalone__dilated_atrous__vision.s.ref").read().split("; Override launch")[0]
e(HEADER.rstrip())
e(f"; @launch grid=(224,1,1) block=(256,1,1) lds={LDS_TOTAL}")
e('.amdgcn_target "amdgcn-amd-amdhsa--gfx950"')
e(".text")
e(".globl standalone__dilated_atrous__vision_kernel")
e(".p2align 8")
e(".type standalone__dilated_atrous__vision_kernel,@function")
e("standalone__dilated_atrous__vision_kernel:")

S_X, S_Wt, S_O = 8, 12, 16
S_WAVE = 20
S_Y0, S_X0, S_TX = 21, 22, 23
S_T0, S_T1, S_T2, S_T3 = 24, 25, 26, 27
S_M0 = 28
S_ROWOFF = 29
S_WOFF = 30
S_OBASE = 31
S_BIG = 32
S_ADJ = 33
S_RM0 = 36
S_WK = 44
ROT = int(os.environ.get("ROT", "1"))
V_LANE = 1
V_INORM, V_ILEFT, V_IRIGHT = 2, 3, 4
V_WOFF = 5
V_A0, V_A1 = 6, 7
V_B01lo, V_B2lo, V_B01hi, V_B2hi = 8, 9, 10, 11
V_O1, V_O2 = 12, 13
V_T0, V_T1, V_T2, V_T3 = 14, 15, 16, 17
V_ST = 20
ACC = 32
PA = 116
WV = 184

def wreg(step, t):
    if step < 21:
        return "a", step * 12 + t * 4
    return "v", WV + (step - 21) * 12 + t * 4

e("    s_cmp_ge_u32 s2, 224")
e("    s_cbranch_scc1 L_done")
if TL:
    e("    s_memtime s[50:51]")
    e("    s_load_dwordx2 s[100:101], s[0:1], 24")
if DEBUG:
    e("    s_memtime s[70:71]")
    e("    s_load_dwordx2 s[68:69], s[0:1], 24")
e("    s_load_dwordx4 s[4:7], s[0:1], 0")
e("    s_load_dwordx2 s[34:35], s[0:1], 16")
e(f"    v_and_b32 v{V_LANE}, 63, v0")
e(f"    v_lshrrev_b32 v{V_T0}, 6, v0")
e("    s_nop 0")
e(f"    v_readfirstlane_b32 s{S_WAVE}, v{V_T0}")
e(f"    s_and_b32 s{S_T3}, s2, 7")
e(f"    s_lshr_b32 s{S_T2}, s2, 3")
e(f"    s_cmp_ge_u32 s{S_T2}, 14")
e(f"    s_cselect_b32 s{S_T1}, 1, 0")
e(f"    s_cselect_b32 s{S_T0}, 14, 0")
e(f"    s_sub_u32 s{S_TX}, s{S_T2}, s{S_T0}")
e(f"    s_lshl_b32 s{S_T3}, s{S_T3}, 1")
e(f"    s_add_u32 s{S_T1}, s{S_T1}, s{S_T3}")
e(f"    s_mul_i32 s{S_Y0}, s{S_T1}, {TH}")
e(f"    s_lshl_b32 s{S_X0}, s{S_TX}, 4")
e(f"    s_mov_b32 s{S_BIG}, {BIG}")
e(f"    s_cmp_eq_u32 s{S_TX}, 0")
e(f"    s_cselect_b32 s{S_ADJ}, 384, 0")
e(f"    v_mul_u32_u24 v{V_T0}, 4682, v{V_LANE}")
e(f"    v_lshrrev_b32 v{V_T0}, 16, v{V_T0}")
e(f"    v_mul_u32_u24 v{V_T1}, 14, v{V_T0}")
e(f"    v_sub_u32 v{V_T1}, v{V_LANE}, v{V_T1}")
e(f"    v_mul_u32_u24 v{V_T2}, 192, v{V_T0}")
e(f"    v_lshl_add_u32 v{V_INORM}, v{V_T1}, 4, v{V_T2}")
e(f"    v_mov_b32 v{V_T3}, {BIG}")
e(f"    v_mov_b32 v{V_ILEFT}, v{V_INORM}")
e(f"    v_mov_b32 v{V_IRIGHT}, v{V_INORM}")
e(f"    s_cmp_eq_u32 s{S_TX}, 0")
e("    s_cbranch_scc0 L_notleft")
e(f"    v_subrev_u32 v{V_T2}, 384, v{V_INORM}")
e(f"    v_cmp_lt_u32 vcc, 1, v{V_T0}")
e("    s_nop 1")
e(f"    v_cndmask_b32 v{V_ILEFT}, v{V_T3}, v{V_T2}, vcc")
e("L_notleft:")
e(f"    s_cmp_eq_u32 s{S_TX}, 13")
e("    s_cbranch_scc0 L_notright")
e(f"    v_cmp_gt_u32 vcc, 2, v{V_T0}")
e("    s_nop 1")
e(f"    v_cndmask_b32 v{V_IRIGHT}, v{V_T3}, v{V_INORM}, vcc")
e("L_notright:")
e(f"    v_lshlrev_b32 v{V_WOFF}, 4, v{V_LANE}")
if ROT:
    e(f"    s_lshr_b32 s{S_T0}, s2, 3")
else:
    e(f"    s_mov_b32 s{S_T0}, 0")
e(f"    s_add_u32 s{S_T1}, s{S_T0}, s{S_WAVE}")
e(f"    s_and_b32 s{S_T1}, s{S_T1}, 3")
e(f"    s_mul_i32 s{S_WOFF}, s{S_T1}, 4608")
e(f"    s_lshr_b32 s{S_T0}, s{S_T0}, 2")
for k in range(4):
    e(f"    s_add_u32 s{S_T1}, s{S_T0}, {k}")
    e(f"    s_and_b32 s{S_T1}, s{S_T1}, 3")
    e(f"    s_lshl_b32 s{S_T1}, s{S_T1}, 10")
    e(f"    s_add_u32 s{S_WK+k}, s{S_T1}, s{S_WOFF}")
e(f"    s_add_u32 s{S_WK+4}, s{S_WOFF}, 4096")
imask = 0
for l in range(56):
    if l % 14 < 12:
        imask |= 1 << l
e(f"    s_mov_b32 s40, 0x{imask & 0xffffffff:08x}")
e(f"    s_mov_b32 s41, 0x{imask >> 32:08x}")
e("    s_waitcnt lgkmcnt(0)")
for (r, lo, n) in ((S_X, 4, XBYTES), (S_Wt, 6, WBYTES), (S_O, 34, XBYTES)):
    e(f"    s_mov_b32 s{r}, s{lo}")
    e(f"    s_mov_b32 s{r+1}, s{lo+1}")
    e(f"    s_mov_b32 s{r+2}, {n}")
    e(f"    s_mov_b32 s{r+3}, 0x00020000")

queue = []
def wait_for(tags):
    last = -1
    for i, t in enumerate(queue):
        if t in tags:
            last = i
    n = len(queue) - 1 - last
    assert n <= 63
    e(f"    s_waitcnt vmcnt({n})")

def code_wpiece(tap, k):
    slot = tap % NSLOT
    c = []
    if k == 4:
        c.append("    s_mov_b32 exec_hi, 0")
    c.append(f"    s_add_u32 m0, s{S_WK+k}, {WB + slot*TAPB}")
    c.append(f"    s_add_u32 s{S_T2}, s{S_WK+k}, {tap*TAPB}")
    c.append(f"    buffer_load_dwordx4 v{V_WOFF}, s[{S_Wt}:{S_Wt+3}], s{S_T2} offen lds")
    if k == 4:
        c.append("    s_mov_b32 exec_hi, -1")
    return c

def code_row_setup(it):
    c = []
    c.append(f"    s_add_u32 s{S_T0}, s{S_WAVE}, {4*it}")
    c.append(f"    s_add_u32 s{S_T1}, s{S_T0}, s{S_Y0}")
    c.append(f"    s_sub_u32 s{S_T1}, s{S_T1}, 2")
    c.append(f"    s_mul_i32 s{S_T2}, s{S_T1}, 224")
    c.append(f"    s_add_u32 s{S_T2}, s{S_T2}, s{S_X0}")
    c.append(f"    s_sub_u32 s{S_T2}, s{S_T2}, 2")
    c.append(f"    s_mul_i32 s{S_ROWOFF}, s{S_T2}, 192")
    c.append(f"    s_cmp_lt_u32 s{S_T1}, 224")
    c.append(f"    s_cselect_b32 s{S_ROWOFF}, s{S_ROWOFF}, s{S_BIG}")
    if it == 4:
        c.append(f"    s_cmp_lt_u32 s{S_T0}, 18")
        c.append(f"    s_cselect_b32 s{S_ROWOFF}, s{S_ROWOFF}, s{S_BIG}")
    c.append(f"    s_mul_i32 s{S_RM0}, s{S_T0}, {ROWB}")
    return c

def code_row_instr(it, j):
    c = ["    s_mov_b64 exec, s[40:41]"]
    if j == 0:
        c.append(f"    s_mov_b32 m0, s{S_RM0}")
        c.append(f"    s_add_u32 s{S_T2}, s{S_ROWOFF}, s{S_ADJ}")
        v = V_ILEFT
    else:
        c.append(f"    s_add_u32 m0, s{S_RM0}, {j*4*PSTR}")
        c.append(f"    s_add_u32 s{S_T2}, s{S_ROWOFF}, {j*4*192}")
        v = V_IRIGHT if j == 4 else V_INORM
    c.append(f"    buffer_load_dwordx4 v{v}, s[{S_X}:{S_X+3}], s{S_T2} offen lds")
    c.append("    s_mov_b64 exec, -1")
    return c

STAG = int(os.environ.get("STAG", "1"))
fifo = []
lblc = [0]
def push(code, tag, direct):
    if tag is not None:
        queue.append(tag)
    if direct or not STAG:
        for x in code:
            e(x)
        return
    if STAG == 2:
        fifo.append(code)
        return
    for w in range(4):
        lblc[0] += 1
        fifo.append([f"    s_cmp_eq_u32 s{S_WAVE}, {w}", f"    s_cbranch_scc0 L_sk{lblc[0]}"] + code + [f"L_sk{lblc[0]}:"])

def pop_fifo(n=1):
    for _ in range(n):
        if fifo:
            for x in fifo.pop(0):
                e(x)

def flush_fifo():
    while fifo:
        pop_fifo()

def emit_wtap(tap, direct=False):
    for k in range(5):
        push(code_wpiece(tap, k), ("W", tap), direct)

def emit_row_setup(it, direct=False):
    global _pending_setup
    _pending_setup = code_row_setup(it)

_pending_setup = []
def emit_row_instr(it, j, direct=False):
    global _pending_setup
    push(_pending_setup + code_row_instr(it, j), ("R", it), direct)
    _pending_setup = []

SCHED = os.environ.get("SCHED", "A")
if SCHED == "A":
    units = [(0,[0,1]), (1,[0,1]), (0,[2,3]), (1,[2,3]), (2,[0,1,2,3]),
             (0,[4,5]), (1,[4,5]), (2,[4,5]), (3,[0,1,2,3,4]),
             (0,[6]), (1,[6]), (2,[6]), (3,[5,6]), (4,list(range(7))),
             (5,list(range(7))), (6,list(range(7)))]
    for j in range(7):
        units += [(7,[j]), (8,[j])]
elif SCHED == "P":
    units = [(0,[0,1]), (1,[0,1]), (0,[2,3]), (1,[2,3]), (2,[0,1,2,3]),
             (0,[4,5]), (1,[4,5]), (2,[4,5]), (3,[0,1,2,3,4]),
             (0,[6]), (1,[6]), (2,[6]), (3,[5,6]), (4,list(range(7))),
             (5,list(range(7))), (6,list(range(7)))]
    units += [(7,[0,1,2]), (8,[0,1,2]), (7,[3,4]), (8,[3,4]), (7,[5,6]), (8,[5,6])]
elif SCHED == "B":
    units = [(t, list(range(7))) for t in range(7)]
    for j in range(7):
        units += [(7,[j]), (8,[j])]
cov = {}
for t, rows in units:
    for j in rows:
        assert (t, j) not in cov
        cov[(t, j)] = 1
assert len(cov) == 63
steps = []
for t, rows in units:
    for ks in range(3):
        steps.append((t, ks, rows))
NS = len(steps)
def row_group(t, j):
    ky = t // 3
    return (2 * j + 1 + 2 * ky) // 4
last_use_row = {}
for i, (t, ks, rows) in enumerate(steps):
    for j in rows:
        last_use_row[j] = i

emit_wtap(0, True)
emit_row_setup(0, True)
for j in range(5):
    emit_row_instr(0, j, True)
pend = [("W", 1), ("R", 1), ("W", 2), ("R", 2), ("W", 3), ("R", 3), ("R", 4)]
pend_flat = []
for k, a in pend:
    if k == "W":
        pend_flat.append(("W", a))
    else:
        pend_flat.append(("Rs", a))
        for j in range(5):
            pend_flat.append(("Ri", a, j))
NPRE = int(os.environ.get("NPRE", "7"))
def issue_item(it, direct=False):
    if it[0] == "W":
        emit_wtap(it[1], direct)
    elif it[0] == "Rs":
        emit_row_setup(it[1], direct)
    else:
        emit_row_instr(it[1], it[2], direct)
for _ in range(NPRE):
    issue_item(pend_flat.pop(0), True)
e(f"    v_and_b32 v{V_T0}, 15, v{V_LANE}")
e(f"    v_lshrrev_b32 v{V_T1}, 4, v{V_LANE}")
e(f"    s_and_b32 s{S_T0}, s{S_WAVE}, 1")
e(f"    s_mul_i32 s{S_T0}, s{S_T0}, {ROWB}")
e(f"    v_mul_u32_u24 v{V_A0}, {PSTR}, v{V_T0}")
e(f"    v_lshl_add_u32 v{V_A0}, v{V_T1}, 4, v{V_A0}")
e(f"    v_add_u32 v{V_A0}, s{S_T0}, v{V_A0}")
e(f"    v_add_u32 v{V_A1}, {8*ROWB}, v{V_A0}")
e(f"    v_lshrrev_b32 v{V_T2}, 2, v{V_T0}")
e(f"    v_and_b32 v{V_T3}, 3, v{V_T0}")
e(f"    v_lshl_add_u32 v{V_T2}, v{V_T1}, 3, v{V_T2}")
e(f"    v_mul_u32_u24 v{V_T2}, 192, v{V_T2}")
e(f"    s_lshr_b32 s{S_T1}, s{S_WAVE}, 1")
e(f"    s_mul_i32 s{S_T1}, s{S_T1}, 96")
e(f"    s_add_u32 s{S_T1}, s{S_T1}, {WB}")
e(f"    v_add_u32 v{V_T2}, s{S_T1}, v{V_T2}")
e(f"    v_lshl_add_u32 v{V_B01lo}, v{V_T3}, 4, v{V_T2}")
e(f"    v_lshl_add_u32 v{V_B2lo}, v{V_T3}, 3, v{V_T2}")
e(f"    v_add_u32 v{V_B2lo}, 64, v{V_B2lo}")
e(f"    v_add_u32 v{V_B01hi}, {2*TAPB}, v{V_B01lo}")
e(f"    v_add_u32 v{V_B2hi}, {2*TAPB}, v{V_B2lo}")
e(f"    v_mul_u32_u24 v{V_O1}, 192, v{V_T0}")
e(f"    s_lshr_b32 s{S_T1}, s{S_WAVE}, 1")
e(f"    s_mul_i32 s{S_T1}, s{S_T1}, 96")
e(f"    v_add_u32 v{V_O1}, s{S_T1}, v{V_O1}")
e(f"    v_lshl_add_u32 v{V_O2}, v{V_T1}, 3, v{V_O1}")
e(f"    v_add_u32 v{V_O2}, 64, v{V_O2}")
e(f"    v_lshl_add_u32 v{V_O1}, v{V_T1}, 4, v{V_O1}")
e(f"    s_and_b32 s{S_T0}, s{S_WAVE}, 1")
e(f"    s_add_u32 s{S_T0}, s{S_T0}, s{S_Y0}")
e(f"    s_mul_i32 s{S_T0}, s{S_T0}, 224")
e(f"    s_add_u32 s{S_T0}, s{S_T0}, s{S_X0}")
e(f"    s_mul_i32 s{S_OBASE}, s{S_T0}, 192")

def w_reads(step):
    tap, ks = divmod(step, 3)
    slot = tap % NSLOT
    r = []
    for t in range(3):
        for half in range(2):
            off = (slot % 2) * TAPB + ks * 32 * 192 + half * 4 * 192 + (8 if t == 1 else 0)
            if slot < 2:
                base = V_B2lo if t == 2 else V_B01lo
            else:
                base = V_B2hi if t == 2 else V_B01hi
            p, d = wreg(step, t)
            d += half * 2
            r.append(f"    ds_read_b64_tr_b16 {p}[{d}:{d+1}], v{base} offset:{off}")
    return r

def p_reads(step, rows, buf):
    tap, ks = divmod(step, 3)
    ky, kx = divmod(tap, 3)
    r = []
    for n, j in enumerate(rows):
        if j < 4:
            base, jj = V_A0, j
        else:
            base, jj = V_A1, j - 4
        off = ((2 * jj + 2 * ky) * HC + 2 * kx) * PSTR + ks * 64
        d = PA + buf * 28 + n * 4
        r.append(f"    ds_read_b128 v[{d}:{d+3}], v{base} offset:{off}")
    return r

def store_row(j, acc0, k):
    st = V_ST + (k % 2) * 6
    r = []
    for q in range(6):
        r.append(f"    v_cvt_pk_bf16_f32 v{st+q}, v{acc0+2*q}, v{acc0+2*q+1}")
    r.append(f"    s_add_u32 s{S_T3}, s{S_OBASE}, {2*j*224*192}")
    r.append(f"    buffer_store_dwordx4 v[{st}:{st+3}], v{V_O1}, s[{S_O}:{S_O+3}], s{S_T3} offen{STF}")
    r.append(f"    buffer_store_dwordx2 v[{st+4}:{st+5}], v{V_O2}, s[{S_O}:{S_O+3}], s{S_T3} offen{STF}")
    return r


satisfied = set()
w_in_regs = {}
next_wtap = 4
def needs(i):
    t, ks, rows = steps[i]
    n = set()
    if (t, ks) not in w_in_regs:
        n.add(("W", t))
    for j in rows:
        n.add(("R", row_group(t, j)))
    return n

def ensure(i, cur):
    global next_wtap
    n = needs(i) - satisfied
    if not n:
        return
    if ("W", 6) in n:
        n |= {("R", k) for k in range(5)} - satisfied
    def pending_has(tg):
        for it in pend_flat:
            if tg[0] == "W" and it == ("W", tg[1]):
                return True
            if tg[0] == "R" and it[0] in ("Rs", "Ri") and it[1] == tg[1]:
                return True
        return False
    for tg in n:
        while pending_has(tg):
            issue_item(pend_flat.pop(0))
        assert tg in queue, tg
    flush_fifo()
    if TL and TLREG[0] > 52:
        e(f"    s_memtime s[{TLREG[0]}:{TLREG[0]+1}]"); TLREG[0] += 2
    wait_for(n)
    e("    s_barrier")
    if TL:
        e(f"    s_memtime s[{TLREG[0]}:{TLREG[0]+1}]"); TLREG[0] += 2
    satisfied.update(n)
    while next_wtap <= 8:
        old = next_wtap - NSLOT
        if all((old, k) in w_in_regs and w_in_regs[(old, k)] <= cur - 2 for k in range(3)):
            emit_wtap(next_wtap)
            next_wtap += 1
        else:
            break

def reads(i, buf, cur):
    t, ks, rows = steps[i]
    r = []
    if (t, ks) not in w_in_regs:
        r += w_reads(t * 3 + ks)
        w_in_regs[(t, ks)] = cur
    r += p_reads(t * 3 + ks, rows, buf)
    return r

if DEBUG:
    e("    s_memtime s[72:73]")
ensure(0, -1)
if DEBUG:
    e("    s_memtime s[74:75]")
for r in reads(0, 0, -1):
    e(r)
started = set()
gm = [0]
store_q = []
nst = 0
for i in range(NS):
    t, ks, rows = steps[i]
    buf = i % 2
    if i + 1 < NS:
        ensure(i + 1, i)
    e("    s_waitcnt lgkmcnt(0)")
    nxt = reads(i + 1, 1 - buf, i) if i + 1 < NS else []
    nm = 3 * len(rows)
    m = 0
    extra = []
    if store_q and store_q[0][0] <= i:
        _, j = store_q.pop(0)
        extra = store_row(j, ACC + j * 12, nst); nst += 1
    for n, j in enumerate(rows):
        for tt in range(3):
            acc = ACC + (j * 3 + tt) * 4
            p, a = wreg(t * 3 + ks, tt)
            b = PA + buf * 28 + n * 4
            c = f"v[{acc}:{acc+3}]" if (j, tt) in started else "0"
            started.add((j, tt))
            e(f"    v_mfma_f32_16x16x32_bf16 v[{acc}:{acc+3}], {p}[{a}:{a+3}], v[{b}:{b+3}], {c}")
            if m < len(nxt):
                e(nxt[m])
            if m == nm - 1:
                for r in nxt[nm:]:
                    e(r)
            if len(fifo) < (4 if STAG == 1 else 1) and pend_flat:
                it = pend_flat.pop(0)
                issue_item(it)
                if it[0] == "Rs":
                    issue_item(pend_flat.pop(0))
            gm[0] += 1
            if gm[0] % SP == 0:
                pop_fifo()
            m += 1
    if extra:
        flush_fifo()
    for r in extra:
        e(r)
        if "buffer_store" in r:
            queue.append(("S", 0))
    for j in rows:
        if last_use_row[j] == i:
            store_q.append((i + 2, j))
flush_fifo()
assert not pend_flat and next_wtap == 9
if DEBUG:
    e("    s_memtime s[76:77]")
    e("    s_memtime s[86:87]")
if TL:
    e("    s_memtime s[98:99]")
e("    s_nop 7")
e("    s_nop 7")
for _, j in store_q:
    for r in store_row(j, ACC + j * 12, nst):
        e(r)
    nst += 1
if DEBUG:
    e("    s_waitcnt vmcnt(0)")
    e("    s_memtime s[78:79]")
    e("    s_waitcnt lgkmcnt(0)")
    e("    s_mov_b32 s80, s68")
    e("    s_mov_b32 s81, s69")
    e("    s_mov_b32 s82, 256")
    e("    s_mov_b32 s83, 0x00020000")
    regs = [72, 74, 76, 86, 78]
    for q, r in enumerate(regs):
        e(f"    s_sub_u32 s{r}, s{r}, s70")
        e(f"    v_mov_b32 v{20+q}, s{r}")
    e("    v_mov_b32 v30, 0")
    e("    s_mov_b64 exec, 1")
    for q in range(5):
        e(f"    buffer_atomic_umax v{20+q}, v30, s[80:83], 0 offen offset:{4*q}")
    for q in range(5):
        e(f"    v_not_b32 v{20+q}, v{20+q}")
    for q in range(5):
        e(f"    buffer_atomic_umax v{20+q}, v30, s[80:83], 0 offen offset:{32+4*q}")
if TL:
    e("    s_waitcnt vmcnt(0)")
    e("    s_memtime s[8:9]")
    e("    s_waitcnt lgkmcnt(0)")
    e(f"    s_cmp_eq_u32 s2, {TL}")
    e("    s_cbranch_scc0 L_done")
    e(f"    s_cmp_eq_u32 s{S_WAVE}, 0")
    e("    s_cbranch_scc0 L_done")
    e("    s_mov_b32 s12, s100")
    e("    s_mov_b32 s13, s101")
    e("    s_mov_b32 s14, 256")
    e("    s_mov_b32 s15, 0x00020000")
    regs = list(range(52, TLREG[0], 2)) + [98, 8]
    e("    v_mov_b32 v30, 0")
    e("    s_mov_b64 exec, 1")
    for q, r in enumerate(regs):
        e(f"    s_sub_u32 s{r}, s{r}, s50")
        e(f"    v_mov_b32 v31, s{r}")
        e(f"    buffer_store_dword v31, v30, s[12:15], 0 offen offset:{4*q}")
e("L_done:")
e("    s_endpgm")
e('.section .rodata,"a"')
e(".p2align 6")
e(".amdhsa_kernel standalone__dilated_atrous__vision_kernel")
e("  .amdhsa_next_free_vgpr 512")
e("  .amdhsa_next_free_sgpr 102")
e("  .amdhsa_accum_offset 256")
e("  .amdhsa_group_segment_fixed_size 0")
e("  .amdhsa_kernarg_size 40")
e("  .amdhsa_user_sgpr_count 2")
e("  .amdhsa_user_sgpr_kernarg_segment_ptr 1")
e("  .amdhsa_system_sgpr_workgroup_id_x 1")
e(".end_amdhsa_kernel")

path = sys.argv[1] if len(sys.argv) > 1 else "standalone__dilated_atrous__vision.s"
open(path, "w").write("\n".join(out) + "\n")
print("wrote", path, len(out), "lines")
```
